```python
import torch

def _softmax(x, axis=-1):
    return torch.softmax(x, dim=axis)
def _gelu(x):
    return torch.nn.functional.gelu(x, approximate="tanh")
def _silu(x):
    return torch.nn.functional.silu(x)
def _sigmoid(x):
    return torch.sigmoid(x)
def _layernorm(x, axis=-1, eps=1e-5):
    m = x.mean(dim=axis, keepdim=True)
    v = x.var(dim=axis, keepdim=True, unbiased=False)
    return (x - m) / torch.sqrt(v + eps)
def _scatter_add(tgt, idx, src, axis=0):
    return tgt.clone().index_add_(axis, idx, src)
def _segment_sum(src, seg, n):
    out = torch.zeros((n,) + src.shape[1:], dtype=src.dtype)
    return out.index_add_(0, seg, src)
def _pad(x, pw):
    flat = tuple(v for pair in reversed(pw) for v in pair)
    return torch.nn.functional.pad(x, flat)

kernel_name = 'standalone__gqa_block_cached__near_ridge'

def setup_inputs():

    _w = (lambda a: (lambda t: t.to(torch.bfloat16) if t.is_floating_point() else t)(torch.as_tensor(a)))
    B, Sq, D = 8, 64, 512
    Hq, Hkv, Sk, Dh = 32, 8, 2048, 128
    assert Hq % Hkv == 0, (Hq, Hkv)
    return {
        "x": _w((lambda *s: torch.randn(*s, dtype=torch.bfloat16) * 0.8)(B, Sq, D)),
        "k_cache": _w((lambda *s: torch.randn(*s, dtype=torch.bfloat16) * 0.8)(B, Hkv, Sk, Dh)),
        "v_cache": _w((lambda *s: torch.randn(*s, dtype=torch.bfloat16) * 0.05)(B, Hkv, Sk, Dh)),
        "wq": _w((lambda *s: torch.randn(*s, dtype=torch.bfloat16) * 0.8)(D, Hq * Dh) * (D ** -0.5)),
        "wo": _w((lambda *s: torch.randn(*s, dtype=torch.bfloat16) * 0.05)(Hq * Dh, D) * ((Hq * Dh) ** -0.5)),
    }

def reference(x, k_cache, v_cache, wq, wo):
    B, Sq, D = x.shape
    Hq, Dh = 32, 128
    Hkv = k_cache.shape[1]
    rep = Hq // Hkv
    q = (lambda x, *d: x.permute(*d))((x @ wq).reshape(B, Sq, Hq, Dh), 0, 2, 1, 3)
    k = (lambda x, n, axis: torch.repeat_interleave(x, n, dim=axis))(k_cache, rep, axis=1)
    v = (lambda x, n, axis: torch.repeat_interleave(x, n, dim=axis))(v_cache, rep, axis=1)
    scores = torch.einsum("bhqd,bhkd->bhqk", q, k) * (Dh ** -0.5)
    p = _softmax(scores, axis=-1)
    o = torch.einsum("bhqk,bhkd->bhqd", p, v)
    return (lambda x, *d: x.permute(*d))(o, 0, 2, 1, 3).reshape(B, Sq, Hq * Dh) @ wo
```

```python
NAME = "standalone__gqa_block_cached__near_ridge"

HEADER = """; Kernarg layout for this problem (64 bytes, ptrs only, base s[0:1]):
"""

class Asm:
    def __init__(self):
        self.lines = []
    def __call__(self, s=""):
        for l in s.split("\n"):
            self.lines.append("    " + l.strip() if l.strip() and not l.strip().endswith(":") else l.strip())
    def label(self, n):
        self.lines.append(n + ":")
    def comment(self, s):
        self.lines.append("    ; " + s)
    def text(self):
        return "\n".join(self.lines) + "\n"

def kernel_block(label, body, vgpr, sgpr, accum, wgy=False):
    s = ".text\n.globl %s\n.p2align 8\n.type %s,@function\n%s:\n" % (label, label, label)
    s += body
    s += '.section .rodata,"a"\n.p2align 6\n.amdhsa_kernel %s\n' % label
    s += "  .amdhsa_next_free_vgpr %d\n  .amdhsa_next_free_sgpr %d\n  .amdhsa_accum_offset %d\n" % (vgpr, sgpr, accum)
    s += "  .amdhsa_group_segment_fixed_size 0\n  .amdhsa_kernarg_size 64\n  .amdhsa_user_sgpr_count 2\n"
    s += "  .amdhsa_user_sgpr_kernarg_segment_ptr 1\n  .amdhsa_system_sgpr_workgroup_id_x 1\n"
    if wgy:
        s += "  .amdhsa_system_sgpr_workgroup_id_y 1\n"
    s += "  .amdhsa_float_denorm_mode_32 3\n"
    s += ".end_amdhsa_kernel\n"
    return s

def full_file(launches, kernels):
    s = HEADER
    for (label, g, b, lds) in launches:
        if label is None:
            s += "; @launch grid=(%d,%d,%d) block=(%d,%d,%d) lds=%d\n" % (*g, *b, lds)
        else:
            s += "; @launch kernel=%s grid=(%d,%d,%d) block=(%d,%d,%d) lds=%d\n" % (label, *g, *b, lds)
    s += '.amdgcn_target "amdgcn-amd-amdhsa--gfx950"\n'
    s += "".join(kernels)
    return s
```

```python
from asmlib import *
import math

OWS = 0
C_SCALE = math.log2(math.e) / math.sqrt(128.0)
import struct
def f2u(x): return struct.unpack("<I", struct.pack("<f", x))[0]

def vr(a, n=1): return "v%d" % a if n == 1 else "v[%d:%d]" % (a, a + n - 1)
def ar(a, n=1): return "a%d" % a if n == 1 else "a[%d:%d]" % (a, a + n - 1)

def gen_attn():
    a = Asm()
    a("""
    s_cmp_ge_u32 s2, 256
    s_cbranch_scc1 A_end
    s_load_dwordx4 s[4:7], s[0:1], 0
    s_load_dwordx2 s[8:9], s[0:1], 16
    s_load_dwordx2 s[10:11], s[0:1], 24
    s_load_dwordx2 s[12:13], s[0:1], 56
    v_lshrrev_b32 v1, 6, v0
    v_and_b32 v2, 63, v0
    s_nop 1
    v_readfirstlane_b32 s40, v1
    s_and_b32 s41, s2, 7                 ; hkv
    s_lshr_b32 s42, s2, 3
    s_and_b32 s43, s42, 3
    s_lshr_b32 s44, s42, 2               ; b
    s_lshl_b32 s45, s41, 2
    s_add_u32 s45, s45, s43              ; h
    s_lshl_b32 s46, s44, 3
    s_add_u32 s46, s46, s41              ; b*8+hkv
    s_lshl_b32 s46, s46, 19
    s_waitcnt lgkmcnt(0)
    s_lshl_b32 s47, s44, 16
    s_add_u32 s16, s4, s47
    s_addc_u32 s17, s5, 0
    s_mov_b32 s18, 65536
    s_mov_b32 s19, 0x20000
    s_add_u32 s20, s6, s46
    s_addc_u32 s21, s7, 0
    s_mov_b32 s22, 524288
    s_mov_b32 s23, 0x20000
    s_add_u32 s24, s8, s46
    s_addc_u32 s25, s9, 0
    s_mov_b32 s26, 524288
    s_mov_b32 s27, 0x20000
    s_lshl_b32 s47, s45, 8               ; h*256 bytes
    s_add_u32 s28, s10, s47
    s_addc_u32 s29, s11, 0
    s_sub_u32 s30, 4194304, s47
    s_mov_b32 s31, 0x20000
    s_lshl_b32 s47, s44, 19              ; b*64*8192
    s_add_u32 s32, s12, s47
    s_addc_u32 s33, s13, 0
    s_mov_b32 s34, 524288
    s_mov_b32 s35, 0x20000
    """)
    a("""
    v_and_b32 v3, 31, v2
    v_lshrrev_b32 v4, 5, v2
    v_and_b32 v5, 15, v2
    v_lshrrev_b32 v6, 4, v2
    """)
    a("v_xor_b32 v7, v5, v6")
    for p in range(4):
        a("v_xor_b32 v8, %d, v7" % (4 * p))
        a("v_lshlrev_b32 v8, 4, v8")
        a("v_lshlrev_b32 v9, 8, v6")
        a("v_add_u32 v%d, v8, v9" % (10 + p))
        a("v_lshlrev_b32 v9, 10, v6")
        a("v_add_u32 v%d, v8, v9" % (14 + p))
    a("""
    v_lshlrev_b32 v8, 2, v6
    v_xor_b32 v8, v5, v8
    v_lshlrev_b32 v8, 4, v8
    v_lshlrev_b32 v9, 8, v6
    v_add_u32 v18, v8, v9
    v_lshlrev_b32 v9, 13, v6
    v_add_u32 v19, v8, v9
    """)
    a("""
    v_and_b32 v8, 15, v3
    v_xor_b32 v8, v8, v4
    v_lshlrev_b32 v8, 4, v8
    v_lshlrev_b32 v9, 8, v3
    v_add_u32 v8, v8, v9
    """)
    for s in range(8):
        a("v_xor_b32 v%d, %d, v8" % (20 + s, 32 * s))
    a("""
    v_bfe_u32 v8, v2, 2, 2      ; r4
    v_bfe_u32 v9, v2, 4, 1      ; g
    v_and_b32 v36, 3, v2        ; c4
    """)
    for db in range(4):
        a("v_xor_b32 v37, %d, v8" % db)
        a("v_lshlrev_b32 v37, 6, v37")
        a("v_lshlrev_b32 v38, 5, v9")
        a("v_add_u32 v37, v37, v38")
        a("v_lshlrev_b32 v38, 2, v4")
        a("v_add_u32 v38, v38, v8")
        a("v_lshlrev_b32 v38, 8, v38")
        a("v_add_u32 v38, v38, v37")
        a("v_lshlrev_b32 v39, 3, v36")
        a("v_add_u32 v%d, v38, v39" % (28 + db))
        a("v_lshlrev_b32 v38, 3, v4")
        a("v_add_u32 v38, v38, v8")
        a("v_lshlrev_b32 v38, 8, v38")
        a("v_add_u32 v38, v38, v37")
        a("v_and_b32 v39, 1, v36")
        a("v_lshlrev_b32 v39, 4, v39")
        a("v_add_u32 v38, v38, v39")
        a("v_lshrrev_b32 v39, 1, v36")
        a("v_lshlrev_b32 v39, 3, v39")
        a("v_add_u32 v%d, v38, v39" % (32 + db))
    for i in range(32):
        a("v_mov_b32 v%d, 0" % (64 + i))
    a("""
    v_mov_b32 v40, v32
    s_cmp_eq_u32 s40, 1
    s_cbranch_scc0 A_q1
    v_mov_b32 v40, v33
    """)
    a.label("A_q1")
    a("""
    s_cmp_eq_u32 s40, 2
    s_cbranch_scc0 A_q2
    v_mov_b32 v40, v34
    """)
    a.label("A_q2")
    a("""
    s_cmp_eq_u32 s40, 3
    s_cbranch_scc0 A_q3
    v_mov_b32 v40, v35
    """)
    a.label("A_q3")
    for ch in range(4):
        a("s_lshl_b32 s50, s40, 12")
        a("s_lshl_b32 s51, s40, 14")
        a("s_add_u32 s51, s51, %d" % (ch * 256))
        for p in range(4):
            a("s_add_u32 m0, s50, %d" % (p * 1024))
            a("s_add_u32 s52, s51, %d" % (p * 4096))
            a("buffer_load_dwordx4 v%d, s[16:19], s52 offen lds" % (14 + p))
        a("s_lshl_b32 s50, s40, 13")
        a("s_add_u32 s50, s50, 16384")
        a("s_lshl_b32 s51, s40, 18")
        a("s_add_u32 s51, s51, %d" % (ch * 128 * 8192))
        for p in range(8):
            a("s_add_u32 m0, s50, %d" % (p * 1024))
            a("s_add_u32 s52, s51, %d" % (p * 4 * 8192))
            a("buffer_load_dwordx4 v19, s[28:31], s52 offen lds")
        a("s_waitcnt vmcnt(0)")
        a("s_barrier")
        for ks in range(8):
            a("ds_read_b64_tr_b16 v[44:45], v40 offset:%d" % (16384 + (16 * ks) * 256))
            a("ds_read_b64_tr_b16 v[46:47], v40 offset:%d" % (16384 + (16 * ks + 4) * 256))
            a("ds_read_b128 v[48:51], v%d offset:0" % (20 + ks))
            a("ds_read_b128 v[52:55], v%d offset:8192" % (20 + ks))
            a("s_waitcnt lgkmcnt(0)")
            a("v_mfma_f32_32x32x16_bf16 v[64:79], v[44:47], v[48:51], v[64:79]")
            a("v_mfma_f32_32x32x16_bf16 v[80:95], v[44:47], v[52:55], v[80:95]")
        a("s_nop 7")
        a("s_barrier")
    a("s_nop 15")
    a("s_mov_b32 s53, 0x%x" % f2u(C_SCALE))
    for i in range(32):
        a("v_mul_f32 v%d, s53, v%d" % (64 + i, 64 + i))
    a("v_lshlrev_b32 v41, 4, v2")
    a("s_lshl_b32 s50, s40, 12")
    a("v_add_u32 v41, s50, v41")
    for qb in range(2):
        for t in range(2):
            base = 64 + 16 * qb + 8 * t
            for e in range(4):
                a("v_cvt_pk_bf16_f32 v%d, v%d, v%d" % (44 + e, base + 2 * e, base + 2 * e + 1))
            a("ds_write_b128 v41, v[44:47] offset:%d" % ((t * 2 + qb) * 1024))
            a("s_nop 1")
    a("s_waitcnt lgkmcnt(0)")
    a("s_barrier")
    a("v_lshlrev_b32 v41, 4, v2")
    for s in range(8):
        for qb in range(2):
            a("ds_read_b128 %s, v41 offset:%d" % (ar((s * 2 + qb) * 4, 4), (s * 2 + qb) * 1024))
    a("s_waitcnt lgkmcnt(0)")
    a("s_barrier")
    a("s_lshl_b32 s54, s40, 14")
    for s in range(8):
        a("v_add_u32 v%d, s54, v%d" % (20 + s, 20 + s))
    for db in range(4):
        a("v_add_u32 v%d, s54, v%d" % (28 + db, 28 + db))
    for i in range(128):
        a("v_mov_b32 v%d, 0" % (128 + i))
    a("v_mov_b32 v56, 0xff800000\nv_mov_b32 v57, 0xff800000\nv_mov_b32 v58, 0\nv_mov_b32 v59, 0")
    a("s_mov_b32 s55, 0")
    a.label("A_loop")
    a("s_lshl_b32 s56, s55, 2")
    a("s_add_u32 s56, s56, s40")
    a("s_lshl_b32 s56, s56, 13")
    for half in range(2):
        a("s_add_u32 m0, s54, %d" % (half * 4096))
        a("s_add_u32 s57, s56, %d" % (half * 4096))
        for p in range(4):
            a("buffer_load_dwordx4 v%d, s[20:23], s57 offen offset:%d lds" % (10 + p, p * 1024))
    for half in range(2):
        a("s_add_u32 m0, s54, %d" % (8192 + half * 4096))
        a("s_add_u32 s57, s56, %d" % (half * 4096))
        for p in range(4):
            a("buffer_load_dwordx4 v18, s[24:27], s57 offen offset:%d lds" % (p * 1024))
    a("s_waitcnt vmcnt(0)")
    for i in range(32):
        a("v_mov_b32 v%d, 0" % (64 + i))
    for s in range(8):
        a("ds_read_b128 v[44:47], v%d" % (20 + s))
        a("s_waitcnt lgkmcnt(0)")
        for qb in range(2):
            a("v_mfma_f32_32x32x16_bf16 v[%d:%d], v[44:47], %s, v[%d:%d]" % (64 + 16 * qb, 79 + 16 * qb, ar((s * 2 + qb) * 4, 4), 64 + 16 * qb, 79 + 16 * qb))
    a("s_nop 15")
    for qb in range(2):
        S = 64 + 16 * qb
        m, l = 56 + qb, 58 + qb
        a("v_max3_f32 v41, v%d, v%d, v%d" % (S, S + 1, S + 2))
        for i in range(3, 15, 2):
            a("v_max3_f32 v41, v41, v%d, v%d" % (S + i, S + i + 1))
        a("v_max_f32 v41, v41, v%d" % (S + 15))
        a("v_mov_b32 v42, v41")
        a("s_nop 1")
        a("v_permlane32_swap_b32 v41, v42")
        a("s_nop 1")
        a("v_max_f32 v41, v41, v42")
        a("v_max_f32 v41, v41, v%d" % m)
        a("v_sub_f32 v42, v%d, v41" % m)
        a("v_exp_f32 v42, v42")
        a("v_mov_b32 v%d, v41" % m)
        a("s_nop 0")
        a("v_mul_f32 v%d, v%d, v42" % (l, l))
        for db in range(4):
            for r in range(16):
                o = 128 + (db * 2 + qb) * 16 + r
                a("v_mul_f32 v%d, v%d, v42" % (o, o))
        for i in range(16):
            a("v_sub_f32 v%d, v%d, v41" % (S + i, S + i))
        for i in range(16):
            a("v_exp_f32 v%d, v%d" % (S + i, S + i))
        a("s_nop 0")
        for i in range(16):
            a("v_add_f32 v%d, v%d, v%d" % (l, l, S + i))
        for e in range(8):
            a("v_cvt_pk_bf16_f32 v%d, v%d, v%d" % (96 + 8 * qb + e, S + 2 * e, S + 2 * e + 1))
    a("s_nop 1")
    for db in range(4):
        for t in range(2):
            a("ds_read_b64_tr_b16 v[44:45], v%d offset:%d" % (28 + db, 8192 + t * 4096))
            a("ds_read_b64_tr_b16 v[46:47], v%d offset:%d" % (28 + db, 8192 + t * 4096 + 2048))
            a("s_waitcnt lgkmcnt(0)")
            for qb in range(2):
                o = 128 + (db * 2 + qb) * 16
                p = 96 + 8 * qb + 4 * t
                a("v_mfma_f32_32x32x16_bf16 v[%d:%d], v[44:47], v[%d:%d], v[%d:%d]" % (o, o + 15, p, p + 3, o, o + 15))
    a("s_nop 15")
    a("s_add_u32 s55, s55, 1")
    a("s_cmp_lt_u32 s55, 16")
    a("s_cbranch_scc1 A_loop")
    for qb in range(2):
        l = 58 + qb
        a("v_mov_b32 v42, v%d" % l)
        a("s_nop 1")
        a("v_permlane32_swap_b32 v%d, v42" % l)
        a("s_nop 1")
        a("v_add_f32 v%d, v%d, v42" % (l, l))
    a("s_barrier")
    a("v_lshlrev_b32 v41, 2, v2")
    a("v_add_u32 v41, 131072, v41")
    a("s_lshl_b32 s50, s40, 9")
    a("v_add_u32 v42, s50, v41")
    for qb in range(2):
        a("ds_write_b32 v42, v%d offset:%d" % (56 + qb, qb * 256))
        a("ds_write_b32 v42, v%d offset:%d" % (58 + qb, 2048 + qb * 256))
    a("s_waitcnt lgkmcnt(0)")
    a("s_barrier")
    for qb in range(2):
        for w in range(4):
            a("ds_read_b32 v%d, v41 offset:%d" % (64 + w, (w * 2 + qb) * 256))
            a("ds_read_b32 v%d, v41 offset:%d" % (68 + w, 2048 + (w * 2 + qb) * 256))
        a("s_waitcnt lgkmcnt(0)")
        a("v_max3_f32 v72, v64, v65, v66")
        a("v_max_f32 v72, v72, v67")
        for w in range(4):
            a("v_sub_f32 v%d, v%d, v72" % (64 + w, 64 + w))
        for w in range(4):
            a("v_exp_f32 v%d, v%d" % (64 + w, 64 + w))
        a("s_nop 0")
        a("v_mul_f32 v73, v64, v68")
        for w in range(1, 4):
            a("v_fmac_f32 v73, v%d, v%d" % (64 + w, 68 + w))
        a("v_rcp_f32 v73, v73")
        a("v_sub_f32 v74, v%d, v72" % (56 + qb))
        a("v_exp_f32 v74, v74")
        a("s_nop 0")
        a("v_mul_f32 v74, v74, v73")
        for db in range(4):
            for r in range(16):
                o = 128 + (db * 2 + qb) * 16 + r
                a("v_mul_f32 v%d, v%d, v74" % (o, o))
    a("v_lshlrev_b32 v41, 4, v2")
    a("s_lshl_b32 s50, s40, 15")
    a("v_add_u32 v42, s50, v41")
    for g in range(32):
        a("ds_write_b128 v42, v[%d:%d] offset:%d" % (128 + 4 * g, 131 + 4 * g, g * 1024))
    a("s_waitcnt lgkmcnt(0)")
    a("s_barrier")
    a("s_lshl_b32 s50, s40, 13")
    a("v_add_u32 v42, s50, v41")
    a("v_add_u32 v45, 65536, v42")
    a("s_lshl_b32 s51, s45, 8")
    a("s_lshl_b32 s52, s40, 6")
    a("s_add_u32 s51, s51, s52")
    a("v_lshlrev_b32 v43, 13, v3")
    a("v_lshlrev_b32 v44, 3, v4")
    a("v_add_u32 v43, v43, v44")
    a("v_add_u32 v43, s51, v43")
    for qb in range(2):
        for j in range(4):
            for w in range(4):
                a("ds_read_b128 v[%d:%d], v%d offset:%d" % (64 + 4 * w, 67 + 4 * w, 42 if w < 2 else 45, (w & 1) * 32768 + (qb * 4 + j) * 1024))
            a("s_waitcnt lgkmcnt(0)")
            for i in range(4):
                a("v_add_f32 v%d, v%d, v%d" % (64 + i, 64 + i, 68 + i))
                a("v_add_f32 v%d, v%d, v%d" % (72 + i, 72 + i, 76 + i))
                a("v_add_f32 v%d, v%d, v%d" % (64 + i, 64 + i, 72 + i))
            a("v_cvt_pk_bf16_f32 v80, v64, v65")
            a("v_cvt_pk_bf16_f32 v81, v66, v67")
            a("s_mov_b32 s52, %d" % (qb * 32 * 8192))
            a("buffer_store_dwordx2 v[80:81], v43, s[32:35], s52 offen offset:%d" % (j * 16))
            a("s_nop 1")
    a("s_waitcnt vmcnt(0)")
    a.label("A_end")
    a("s_endpgm")
    return kernel_block("attn_kernel", a.text(), 512, 80, 256)

def gen_out():
    a = Asm()
    a("""
    s_cmp_ge_u32 s2, 256
    s_cbranch_scc1 O_end
    s_load_dwordx2 s[4:5], s[0:1], 32
    s_load_dwordx2 s[6:7], s[0:1], 40
    s_load_dwordx2 s[8:9], s[0:1], 56
    v_lshrrev_b32 v1, 6, v0
    v_and_b32 v2, 63, v0
    s_nop 1
    v_readfirstlane_b32 s40, v1
    s_lshr_b32 s41, s2, 4          ; tm
    s_and_b32 s42, s2, 15          ; tn
    s_waitcnt lgkmcnt(0)
    s_lshl_b32 s43, s42, 6
    s_add_u32 s12, s4, s43
    s_addc_u32 s13, s5, 0
    s_sub_u32 s14, 4194304, s43
    s_mov_b32 s15, 0x20000
    s_lshl_b32 s43, s41, 18        ; tm*32*8192
    s_add_u32 s16, s8, s43
    s_addc_u32 s17, s9, 0
    s_mov_b32 s18, 262144
    s_mov_b32 s19, 0x20000
    s_lshl_b32 s43, s41, 15        ; tm*32*1024
    s_add_u32 s20, s6, s43
    s_addc_u32 s21, s7, 0
    s_mov_b32 s22, 32768
    s_mov_b32 s23, 0x20000
    v_and_b32 v3, 31, v2
    v_lshrrev_b32 v4, 5, v2
    v_lshrrev_b32 v5, 2, v2
    v_lshlrev_b32 v5, 10, v5
    v_and_b32 v6, 3, v2
    v_lshlrev_b32 v6, 4, v6
    v_add_u32 v10, v5, v6
    v_lshlrev_b32 v5, 13, v3
    v_lshlrev_b32 v6, 4, v4
    v_add_u32 v11, v5, v6
    v_bfe_u32 v8, v2, 2, 2
    v_bfe_u32 v9, v2, 4, 1
    v_and_b32 v7, 3, v2
    v_lshlrev_b32 v5, 3, v4
    v_add_u32 v5, v5, v8
    v_lshlrev_b32 v5, 6, v5
    v_lshlrev_b32 v6, 5, v9
    v_add_u32 v5, v5, v6
    v_lshlrev_b32 v6, 3, v7
    v_add_u32 v12, v5, v6
    s_lshl_b32 s44, s40, 13
    v_add_u32 v12, s44, v12
    """)
    for i in range(16):
        a("v_mov_b32 v%d, 0" % (64 + i))
    a("s_mov_b32 s45, 0")
    a.label("O_loop")
    a("s_lshl_b32 s46, s40, 10")
    a("s_lshl_b32 s47, s45, 7")
    a("s_add_u32 s46, s46, s47")
    a("s_lshl_b32 s47, s46, 10")
    a("s_lshl_b32 s48, s46, 1")
    for p in range(8):
        a("s_add_u32 m0, s44, %d" % (p * 1024))
        a("s_add_u32 s49, s47, %d" % (p * 16 * 1024))
        a("buffer_load_dwordx4 v10, s[12:15], s49 offen lds")
    for p in range(8):
        a("buffer_load_dwordx4 v[%d:%d], v11, s[16:19], s48 offen offset:%d" % (16 + 4 * p, 19 + 4 * p, p * 32))
    a("s_waitcnt vmcnt(0)")
    for p in range(8):
        a("ds_read_b64_tr_b16 v[48:49], v12 offset:%d" % (p * 1024))
        a("ds_read_b64_tr_b16 v[50:51], v12 offset:%d" % (p * 1024 + 256))
        a("s_waitcnt lgkmcnt(0)")
        a("v_mfma_f32_32x32x16_bf16 v[64:79], v[48:51], v[%d:%d], v[64:79]" % (16 + 4 * p, 19 + 4 * p))
    a("s_nop 7")
    a("s_add_u32 s45, s45, 1")
    a("s_cmp_lt_u32 s45, 8")
    a("s_cbranch_scc1 O_loop")
    a("s_nop 15")
    a("s_barrier")
    a("v_lshlrev_b32 v13, 4, v2")
    a("s_lshl_b32 s46, s40, 12")
    a("v_add_u32 v14, s46, v13")
    for j in range(4):
        a("ds_write_b128 v14, v[%d:%d] offset:%d" % (64 + 4 * j, 67 + 4 * j, j * 1024))
    a("s_waitcnt lgkmcnt(0)")
    a("s_barrier")
    a("s_lshl_b32 s46, s40, 10")
    a("v_add_u32 v14, s46, v13")
    for w in range(4):
        a("ds_read_b128 v[%d:%d], v14 offset:%d" % (64 + 4 * w, 67 + 4 * w, w * 4096))
    a("s_waitcnt lgkmcnt(0)")
    for i in range(4):
        a("v_add_f32 v%d, v%d, v%d" % (64 + i, 64 + i, 68 + i))
        a("v_add_f32 v%d, v%d, v%d" % (72 + i, 72 + i, 76 + i))
        a("v_add_f32 v%d, v%d, v%d" % (64 + i, 64 + i, 72 + i))
    a("v_cvt_pk_bf16_f32 v80, v64, v65")
    a("v_cvt_pk_bf16_f32 v81, v66, v67")
    a("s_lshl_b32 s46, s42, 6")
    a("s_lshl_b32 s47, s40, 4")
    a("s_add_u32 s46, s46, s47")
    a("v_lshlrev_b32 v5, 10, v3")
    a("v_lshlrev_b32 v6, 3, v4")
    a("v_add_u32 v5, v5, v6")
    a("buffer_store_dwordx2 v[80:81], v5, s[20:23], s46 offen")
    a("s_waitcnt vmcnt(0)")
    a.label("O_end")
    a("s_endpgm")
    return kernel_block("out_kernel", a.text(), 128, 64, 128)

def build(pre=None):
    launches = []
    ks = []
    if pre:
        for (label, blk, g, b, lds) in pre:
            launches.append((label, g, b, lds)); ks.append(blk)
    launches += [("attn_kernel", (256, 1, 1), (256, 1, 1), 140 * 1024), ("out_kernel", (256, 1, 1), (256, 1, 1), 32768)]
    ks += [gen_attn(), gen_out()]
    return full_file(launches, ks)

if __name__ == "__main__":
    open("simple.s", "w").write(build())
```

```python
import sys
from asmlib import *

def gen(mode="same", dest="lds", nwaves=4, depth=2, aux="", pattern="lin", nsteps=16, aux_first=None, rot=True, w3=0x20000, steps=False, uniq=False):
    a = Asm()
    a("""
    s_cmp_ge_u32 s2, 256
    s_cbranch_scc1 L_end
    s_load_dwordx4 s[4:7], s[0:1], 8
    s_load_dwordx2 s[8:9], s[0:1], 56
    s_memrealtime s[40:41]
    v_lshrrev_b32 v1, 6, v0
    v_and_b32 v2, 63, v0
    s_nop 1
    v_readfirstlane_b32 s20, v1
    s_and_b32 s21, s2, 7
    s_lshr_b32 s22, s2, 3
    s_and_b32 s23, s22, 3
    s_lshr_b32 s24, s22, 2
    """)
    if mode == "same":
        a("s_mov_b32 s25, s21")
    else:
        a("s_lshl_b32 s25, s24, 3\ns_add_u32 s25, s25, s21")
    a("""
    s_lshl_b32 s26, s25, 19
    s_waitcnt lgkmcnt(0)
    s_add_u32 s12, s4, s26
    s_addc_u32 s13, s5, 0
    s_mov_b32 s14, 524288
    s_mov_b32 s15, W3
    s_add_u32 s16, s6, s26
    s_addc_u32 s17, s7, 0
    s_mov_b32 s18, 524288
    s_mov_b32 s19, W3
    """)
    if pattern == "lin":
        a("v_lshlrev_b32 v3, 4, v2")
    elif pattern == "mfma":
        a("v_and_b32 v3, 31, v2\nv_lshlrev_b32 v3, 8, v3\nv_lshrrev_b32 v4, 5, v2\nv_lshlrev_b32 v4, 4, v4\nv_add_u32 v3, v3, v4")
    per_wave_tiles = 64 // nwaves
    tile_bytes = 16384
    nslots = depth if dest == "lds" else depth
    lds_per_wave = nslots * tile_bytes
    if dest == "lds" and lds_per_wave * nwaves > 160 * 1024:
        raise ValueError("lds")
    a("s_mul_i32 s27, s20, %d" % lds_per_wave)
    def tile_off(t, sdst):
        if uniq:
            a("s_mul_i32 %s, s23, %d" % (sdst, 16))
            a("s_add_u32 %s, %s, s20" % (sdst, sdst))
            a("s_add_u32 %s, %s, %d" % (sdst, sdst, nwaves * t))
        elif rot:
            a("s_add_u32 %s, s23, %d" % (sdst, t & 3))
            a("s_and_b32 %s, %s, 3" % (sdst, sdst))
            a("s_mul_i32 %s, %s, %d" % (sdst, sdst, nwaves))
            a("s_add_u32 %s, %s, s20" % (sdst, sdst))
            a("s_add_u32 %s, %s, %d" % (sdst, sdst, 4 * nwaves * (t >> 2)))
        else:
            a("s_add_u32 %s, s20, %d" % (sdst, nwaves * t))
        a("s_lshl_b32 %s, %s, 13" % (sdst, sdst))
    def dma_list(t):
        L = []
        slot = t % nslots
        ax = aux
        if aux_first is not None and (t & 3) == 0:
            ax = aux_first
        for kv in range(2):
            srd = "s[12:15]" if kv == 0 else "s[16:19]"
            for half in range(2):
                pre = []
                if dest == "lds":
                    pre.append("s_add_u32 m0, s27, %d" % (slot * 16384 + kv * 8192 + half * 4096))
                    pre.append("s_add_u32 s31, s30, %d" % (half * 4096))
                    for p in range(4):
                        L.append((pre if p == 0 else []) + ["buffer_load_dwordx4 v3, %s, s31 offen offset:%d %s lds" % (srd, p * 1024, ax)])
                else:
                    for p in range(4):
                        r = 64 + slot * 64 + kv * 32 + half * 16 + p * 4
                        if pattern == "lin":
                            pr = ["s_add_u32 s31, s30, %d" % (half * 4096)] if p == 0 else []
                            L.append(pr + ["buffer_load_dwordx4 v[%d:%d], v3, %s, s31 offen offset:%d %s" % (r, r + 3, srd, p * 1024, ax)])
                        else:
                            L.append(["buffer_load_dwordx4 v[%d:%d], v3, %s, s30 offen offset:%d %s" % (r, r + 3, srd, (half * 4 + p) * 32, ax)])
        return L
    n = per_wave_tiles if nsteps is None else nsteps
    n = per_wave_tiles
    if uniq: n = per_wave_tiles // 4
    for t in range(min(depth, n)):
        tile_off(t, "s30")
        for g in dma_list(t):
            for ins in g: a(ins)
    for t in range(n):
        outstanding = 16 * (min(t + depth, n) - t - 1)
        a("s_waitcnt vmcnt(%d)" % min(outstanding, 63))
        if steps:
            a("s_memrealtime s[%d:%d]" % (44 + 2 * t, 45 + 2 * t))
        if t + depth < n:
            tile_off(t + depth, "s30")
            for g in dma_list(t + depth):
                for ins in g: a(ins)
    a("""
    s_waitcnt vmcnt(0)
    s_barrier
    s_memrealtime s[42:43]
    s_waitcnt lgkmcnt(0)
    s_cmp_eq_u32 s20, 0
    s_cbranch_scc0 L_end
    s_mul_i32 s28, s2, STRIDE
    s_add_u32 s8, s8, 0x8000000
    s_addc_u32 s9, s9, 0
    s_add_u32 s8, s8, s28
    s_addc_u32 s9, s9, 0
    v_mov_b32 v10, s40
    v_mov_b32 v11, s41
    v_mov_b32 v12, s42
    v_mov_b32 v13, s43
    v_mov_b32 v14, 0
    global_store_dwordx4 v14, v[10:13], s[8:9]
    STEPSTORE
    s_waitcnt vmcnt(0)
    """)
    a.lines = [l.replace("W3", hex(w3)).replace("STRIDE", str(16 + (8 * 16 if steps else 0))) for l in a.lines]
    st = ""
    if steps:
        for t in range(16):
            tt = min(t, n - 1)
            st += "v_mov_b32 v10, s%d\n    v_mov_b32 v11, s%d\n    global_store_dwordx2 v14, v[10:11], s[8:9] offset:%d\n    s_nop 1\n    " % (44 + 2 * tt, 45 + 2 * tt, 16 + 8 * t)
    a.lines = [l.replace("STEPSTORE", st) for l in a.lines]
    a.label("L_end")
    a("s_endpgm")
    lds = nwaves * lds_per_wave if dest == "lds" else 0
    nv = 64 + depth * 64 if dest != "lds" else 64
    nv = min(nv, 256)
    k = kernel_block(NAME + "_kernel", a.text(), nv, 96, nv)
    return full_file([(None, (256, 1, 1), (64 * nwaves, 1, 1), max(lds, 90 * 1024))], [k])

if __name__ == "__main__":
    cfgs = {
        "d_norot_w4d2_nt": dict(mode="grp", dest="lds", nwaves=4, depth=2, aux="nt", rot=False, steps=True),
        "d_norot_w4d1_nt": dict(mode="grp", dest="lds", nwaves=4, depth=1, aux="nt", rot=False, steps=True),
        "d_norot_w8d1_nt": dict(mode="grp", dest="lds", nwaves=8, depth=1, aux="nt", rot=False, steps=True),
        "d_norot_v_w4d3_nt": dict(mode="grp", dest="vgpr", nwaves=4, depth=3, aux="nt", rot=False, steps=True),
        "d_uniq_w4d2_nt": dict(mode="grp", dest="lds", nwaves=4, depth=2, aux="nt", uniq=True, steps=True),
        "d_uniq_w4d1_nt": dict(mode="grp", dest="lds", nwaves=4, depth=1, aux="nt", uniq=True, steps=True),
        "d_rot_w4d2_nt": dict(mode="grp", dest="lds", nwaves=4, depth=2, aux="nt", rot=True, steps=True),
        "d_rot_w4d2": dict(mode="grp", dest="lds", nwaves=4, depth=2, aux="", rot=True, steps=True),
    }
    for n, c in cfgs.items():
        open("dev/%s.s" % n, "w").write(gen(**c))
    print(" ".join(n + ".s" for n in cfgs))
    print(",".join('"dev/%s.s"' % n for n in cfgs))
```

```python
from asmlib import *
import simple, mb2, re

def probe_kernel(**kw):
    txt = mb2.gen(**kw)
    body = txt[txt.index(NAME + "_kernel:\n") + len(NAME + "_kernel:\n"):txt.index('.section .rodata')]
    body = body.replace("L_end", "P_end")
    return kernel_block("probe_kernel", body, 256, 96, 256)

def amp_kernel(amp):
    a = Asm()
    a("""
    s_cmp_ge_u32 s2, 1
    s_cbranch_scc1 M_end
    s_load_dwordx2 s[8:9], s[0:1], 56
    s_waitcnt lgkmcnt(0)
    s_add_u32 s8, s8, 0x8000000
    s_addc_u32 s9, s9, 0
    v_lshlrev_b32 v1, 4, v0
    global_load_dwordx4 v[4:7], v1, s[8:9]
    s_waitcnt vmcnt(0)
    ; low words only: start v4, end v6 (wrap ignored) ; reduce over 256 lanes via LDS
    v_lshlrev_b32 v2, 3, v0
    ds_write_b32 v2, v4
    ds_write_b32 v2, v6 offset:4
    s_waitcnt lgkmcnt(0)
    s_barrier
    v_mov_b32 v8, 0
    v_mov_b32 v9, -1
    v_mov_b32 v10, 0
    s_mov_b32 s20, 0
    ds_read_b32 v11, v8
    s_waitcnt lgkmcnt(0)
    v_mov_b32 v12, v11      ; base = start of wg0
M_loop:
    v_mov_b32 v8, s20
    ds_read_b64 v[14:15], v8
    s_waitcnt lgkmcnt(0)
    v_sub_u32 v14, v14, v12
    v_sub_u32 v15, v15, v12
    v_add_u32 v14, 0x10000, v14
    v_add_u32 v15, 0x10000, v15
    v_min_u32 v9, v9, v14
    v_max_u32 v10, v10, v15
    s_add_u32 s20, s20, 8
    s_cmp_lt_u32 s20, 2048
    s_cbranch_scc1 M_loop
    v_sub_u32 v10, v10, v9
    s_nop 1
    v_readfirstlane_b32 s21, v10
    s_nop 3
    s_mul_i32 s21, s21, %d
    s_memrealtime s[22:23]
    s_waitcnt lgkmcnt(0)
M_spin:
    s_memrealtime s[24:25]
    s_waitcnt lgkmcnt(0)
    s_sub_u32 s26, s24, s22
    s_cmp_lt_u32 s26, s21
    s_cbranch_scc1 M_spin
M_end:
    s_endpgm
    """ % amp)
    return kernel_block("amp_kernel", a.text(), 32, 64, 32)

AMP = 20
cfgs = {
  "p_uniq_nt": dict(mode="grp", dest="lds", nwaves=4, depth=2, aux="nt", uniq=True),
  "p_uniq_def": dict(mode="grp", dest="lds", nwaves=4, depth=2, aux="", uniq=True),
  "p_norot_nt": dict(mode="grp", dest="lds", nwaves=4, depth=2, aux="nt", rot=False),
  "p_norot_def": dict(mode="grp", dest="lds", nwaves=4, depth=2, aux="", rot=False),
  "p_rot_def": dict(mode="grp", dest="lds", nwaves=4, depth=2, aux="", rot=True),
}
for n, c in cfgs.items():
    pre = [("probe_kernel", probe_kernel(**c), (256, 1, 1), (256, 1, 1), 131072),
           ("amp_kernel", amp_kernel(AMP), (1, 1, 1), (256, 1, 1), 4096)]
    open("dev/%s.s" % n, "w").write(simple.build(pre))
pre = [("probe_kernel", probe_kernel(**cfgs["p_uniq_nt"]), (256, 1, 1), (256, 1, 1), 131072),
       ("amp_kernel", amp_kernel(0), (1, 1, 1), (256, 1, 1), 4096)]
open("p_base.s", "w").write(simple.build(pre))
print("ok")
```

```python
import re

class I:
    __slots__ = ("t", "ds", "needs", "cost", "label", "raw", "vm", "vmneeds", "novm")
    def __init__(self, t, ds=None, needs=None, cost=None, label=False, raw=False, vm=None, vmneeds=None, novm=False):
        self.t = t; self.ds = ds; self.needs = needs or []; self.label = label; self.raw = raw
        self.vm = vm; self.vmneeds = vmneeds; self.novm = novm
        if cost is None:
            op = t.split()[0] if t else ""
            cost = 8 if op.startswith(("v_exp", "v_rcp", "v_log", "v_rsq", "v_sqrt")) or op.startswith("v_mfma") else 4
        self.cost = cost

class Prog:
    def __init__(self):
        self.ins = []
    def __call__(self, s, **kw):
        for l in s.split("\n"):
            l = l.strip()
            if not l: continue
            if l.endswith(":"):
                self.ins.append(I(l, label=True))
            else:
                self.ins.append(I(l, **kw))
    def add(self, i): self.ins.append(i)
    def label(self, n): self.ins.append(I(n + ":", label=True))
    def extend(self, L):
        for x in L:
            if isinstance(x, I): self.ins.append(x)
            else: self(x)

def is_ds(t):
    return t.startswith("ds_")

def insert_lgkm(ins):
    out = []
    issued = []
    done = 0
    for x in ins:
        if x.needs:
            last = -1
            for idx, tg in enumerate(issued):
                if tg in x.needs: last = idx
            missing = [n for n in x.needs if n not in issued]
            assert not missing, ("needs unknown tag", missing, x.t)
            if last >= done:
                n = len(issued) - 1 - last
                assert n <= 15, ("lgkm too deep", n, x.t)
                out.append(I("s_waitcnt lgkmcnt(%d)" % n))
                done = last + 1
        m = re.match(r"s_waitcnt.*lgkmcnt\((\d+)\)", x.t)
        if m and not x.label:
            n = int(m.group(1))
            done = max(done, len(issued) - n)
        out.append(x)
        if not x.label and is_ds(x.t):
            issued.append(x.ds)
            assert len(issued) - done <= 15 or True
    return out

def regs_of(tok):
    tok = tok.strip().lstrip("-").strip("|")
    m = re.match(r"^([vas])\[(\d+):(\d+)\]$", tok)
    if m: return [(m.group(1), i) for i in range(int(m.group(2)), int(m.group(3)) + 1)]
    m = re.match(r"^([vas])(\d+)$", tok)
    if m: return [(m.group(1), int(m.group(2)))]
    if tok == "vcc": return [("s", 106), ("s", 107)]
    if tok == "exec": return [("s", 126), ("s", 127)]
    if tok == "m0": return [("s", 124)]
    return []

def parse(t):
    t = t.split(";")[0].strip()
    parts = t.split(None, 1)
    op = parts[0]
    ops = []
    if len(parts) > 1:
        ops = [o.strip() for o in re.split(r",(?![^\[]*\])", parts[1])]
        ops = [o.split()[0] if o else o for o in ops]
    return op, ops

TRANS = ("v_exp", "v_rcp", "v_log", "v_rsq", "v_sqrt", "v_sin", "v_cos")
def classify(t):
    op, ops = parse(t)
    R = lambda i: regs_of(ops[i]) if i < len(ops) else []
    allr = lambda lst: [x for o in lst for x in regs_of(o)]
    if op.startswith("v_mfma"):
        return dict(kind="mfma", w=R(0), r=R(1) + R(2), c=R(3))
    if op.startswith("v_cmp"):
        return dict(kind="valu", w=R(0), r=allr(ops[1:]), sw=True)
    if op.startswith("v_readfirstlane") or op.startswith("v_readlane"):
        return dict(kind="rdlane", w=R(0), r=allr(ops[1:]))
    if op.startswith("v_permlane"):
        return dict(kind="perm", w=R(0) + R(1), r=R(0) + R(1))
    if op.startswith("v_"):
        r = allr(ops[1:])
        if op.startswith(("v_fmac", "v_dot2c")): r += R(0)
        if op.startswith("v_cndmask") and len(ops) == 3: r += regs_of("vcc")
        w = R(0)
        k = "trans" if op.startswith(TRANS) else "valu"
        return dict(kind=k, w=w, r=r)
    if op.startswith("ds_read"):
        return dict(kind="ds", w=R(0), r=R(1))
    if op.startswith("ds_write"):
        return dict(kind="ds", w=[], r=allr(ops))
    if op.startswith("buffer_load"):
        if "lds" in t.split(): return dict(kind="vmem", w=[], r=allr(ops) + [("s", 124)])
        return dict(kind="vmem", w=R(0), r=allr(ops[1:]))
    if op.startswith("buffer_store"):
        return dict(kind="vmemst", w=[], r=allr(ops), data=R(0), wide=("x4" in op or "x3" in op))
    if op.startswith("global_load"):
        return dict(kind="vmem", w=R(0), r=allr(ops[1:]))
    if op.startswith("global_store"):
        return dict(kind="vmemst", w=[], r=allr(ops), data=R(1), wide=("x4" in op or "x3" in op))
    if op.startswith("global_atomic"):
        return dict(kind="vmem", w=[], r=allr(ops))
    if op == "s_nop":
        return dict(kind="nop", n=int(ops[0], 0) + 1, w=[], r=[])
    if op.startswith("s_"):
        w = R(0) if not op.startswith(("s_cmp", "s_cbranch", "s_branch", "s_waitcnt", "s_barrier", "s_setpc", "s_endpgm", "s_sleep", "s_setprio", "s_bitcmp")) else []
        return dict(kind="salu", w=w, r=allr(ops[1:]))
    return dict(kind="other", w=[], r=[])

def check_hazards(ins, name=""):
    seq = [x for x in ins if not x.label]
    info = [classify(x.t) for x in seq]
    nviol = 0
    W = 24
    for j, cj in enumerate(info):
        dist = 0
        for i in range(j - 1, max(-1, j - W - 1), -1):
            ci = info[i]
            need = 0; why = ""
            wi = set(ci["w"]); rj = set(cj["r"]); wj = set(cj["w"])
            vw = {x for x in wi if x[0] in "va"}
            sw = {x for x in wi if x[0] == "s"}
            ki, kj = ci["kind"], cj["kind"]
            if ki in ("valu", "trans", "perm") :
                if kj == "mfma" and vw & (rj | set(cj.get("c", []))): need, why = 2, "valu->mfma"
                if kj == "perm" and vw & rj: need, why = max(need, 2), "valu->permlane"
                if kj == "rdlane" and vw & rj: need, why = max(need, 1), "valu->readlane"
                if ki == "trans" and kj in ("valu", "perm", "rdlane", "mfma") and vw & rj: need, why = max(need, 1), "trans->use"
                if sw and kj in ("vmem", "vmemst") and sw & rj: need, why = max(need, 5), "valu sgpr->vmem"
                if sw and kj in ("valu", "trans") and sw & rj: need, why = max(need, 2), "valu sgpr->valu"
            if ki == "rdlane":
                if kj in ("vmem", "vmemst") and sw & rj: need, why = 5, "readlane sgpr->vmem"
                if kj in ("valu", "trans") and sw & rj: need, why = 2, "readlane sgpr->valu"
            if ki == "mfma":
                D = vw
                if kj == "mfma":
                    c = set(cj.get("c", []))
                    if D & rj: need, why = 12, "mfma D->A/B"
                    elif D & c and c != D: need, why = 10, "mfma D->C overlap"
                    elif D & wj and wj != D: need, why = 10, "mfma D->D overlap"
                elif kj in ("valu", "trans", "perm", "rdlane"):
                    if D & (rj | wj): need, why = 12, "mfma D->valu"
                    cc = set(ci.get("c", []))
                    if cc & wj: need, why = max(need, 7), "mfma C WAR valu"
                elif kj in ("ds", "vmem", "vmemst"):
                    if D & (rj | wj): need, why = 12, "mfma D->mem"
            if ki == "salu" and ("s", 124) in wi and kj == "vmem" and ("s", 124) in rj: need, why = 1, "m0->dma"
            if ki == "vmemst" and ci.get("wide") and kj in ("valu", "trans", "perm") and set(ci["data"]) & wj: need, why = 2, "store data WAR"
            if need > dist:
                print("HAZARD[%s] %s need %d have %d:\n    %s\n    %s" % (name, why, need, dist, seq[i].t, seq[j].t))
                nviol += 1
            dist += ci.get("n", 1)
            if dist >= 20: break
    return nviol

def size_of(t):
    return None

def render(ins):
    return "\n".join((x.t if x.label else "    " + x.t) for x in ins) + "\n"


def is_vmem(t):
    return t.startswith(("buffer_load", "buffer_store", "global_load", "global_store", "global_atomic", "buffer_atomic"))

def WVM(*tags):
    return I("@waitvm", vmneeds=list(tags))

def insert_vm(ins):
    out = []
    issued = []
    done = 0
    for x in ins:
        if x.vmneeds is not None:
            last = -1
            for idx, tg in enumerate(issued):
                if tg in x.vmneeds: last = idx
            missing = [n for n in x.vmneeds if n not in issued]
            assert not missing, ("vm needs unknown tag", missing)
            if last >= done:
                n = len(issued) - 1 - last
                out.append(I("s_waitcnt vmcnt(%d)" % min(n, 63)))
                done = max(done, len(issued) - min(n, 63))
            continue
        m = re.match(r"s_waitcnt.*vmcnt\((\d+)\)", x.t)
        if m and not x.label and not x.novm:
            done = max(done, len(issued) - int(m.group(1)))
        out.append(x)
        if not x.label and is_vmem(x.t) and not x.novm:
            issued.append(x.vm)
    return out
```

```python
import math, struct, sys
from asmlib import kernel_block, full_file, NAME
from fw import *

def f2u(x): return struct.unpack("<I", struct.pack("<f", x))[0]
C_SCALE = math.log2(math.e) / math.sqrt(128.0)

QF, WOP, PART, STAT, OF, FLAGS = 0x0, 0x400000, 0x800000, 0x1800000, 0x2000000, 0x2800000
WS_BYTES = 0x3000000
STAMP = 0x8000000

def vr(a, n): return "v[%d:%d]" % (a, a + n - 1)
def ar(a, n): return "a[%d:%d]" % (a, a + n - 1)

def stamp_code(p, idx, nst, sreg):
    p("s_memrealtime s[%d:%d]" % (sreg, sreg + 1))

def stamp_store(p, sregs, wsreg, wavereg, label, nst):
    p("s_waitcnt lgkmcnt(0)")
    p("s_cmp_eq_u32 %s, 0" % wavereg)
    p("s_cbranch_scc0 %s" % label)
    p("s_mul_i32 s94, s2, %d" % (8 * nst))
    p("s_add_u32 s96, s%d, 0x%x" % (wsreg, STAMP))
    p("s_addc_u32 s97, s%d, 0" % (wsreg + 1))
    p("s_add_u32 s96, s96, s94")
    p("s_addc_u32 s97, s97, 0")
    p("v_mov_b32 v2, 0")
    for i, r in enumerate(sregs):
        p("v_mov_b32 v4, s%d" % r)
        p("v_mov_b32 v5, s%d" % (r + 1))
        p("global_store_dwordx2 v2, v[4:5], s[96:97] offset:%d" % (8 * i))
        p("s_nop 1")
    p("s_waitcnt vmcnt(0)")
    p.label(label)

def lane_consts_tr(p, lane, hf, base_v, mode, tmp):
    t0, t1, t2, t3, t4 = tmp, tmp + 1, tmp + 2, tmp + 3, tmp + 4
    p("v_bfe_u32 v%d, v%d, 2, 2" % (t0, lane))
    p("v_bfe_u32 v%d, v%d, 4, 1" % (t1, lane))
    p("v_and_b32 v%d, 3, v%d" % (t2, lane))
    p("v_lshlrev_b32 v%d, %d, v%d" % (t3, 2 if mode == "V" else 3, hf))
    p("v_add_u32 v%d, v%d, v%d" % (t3, t3, t0))
    p("v_lshlrev_b32 v%d, 8, v%d" % (t3, t3))
    p("v_lshlrev_b32 v%d, 5, v%d" % (t4, t1))
    p("v_add_u32 v%d, v%d, v%d" % (t3, t3, t4))
    if mode == "V":
        p("v_lshlrev_b32 v%d, 3, v%d" % (t4, t2))
        p("v_add_u32 v%d, v%d, v%d" % (t3, t3, t4))
    else:
        p("v_and_b32 v%d, 1, v%d" % (t4, t2))
        p("v_lshlrev_b32 v%d, 4, v%d" % (t4, t4))
        p("v_add_u32 v%d, v%d, v%d" % (t3, t3, t4))
        p("v_lshrrev_b32 v%d, 1, v%d" % (t4, t2))
        p("v_lshlrev_b32 v%d, 3, v%d" % (t4, t4))
        p("v_add_u32 v%d, v%d, v%d" % (t3, t3, t4))
    for db in range(4):
        p("v_xor_b32 v%d, %d, v%d" % (t4, db, t0))
        p("v_lshlrev_b32 v%d, 6, v%d" % (t4, t4))
        p("v_add_u32 v%d, v%d, v%d" % (base_v + db, t3, t4))

def lane_consts_k(p, lane, hf, base_v, tmp):
    t0, t1 = tmp, tmp + 1
    p("v_and_b32 v%d, 15, v%d" % (t0, lane))
    p("v_xor_b32 v%d, v%d, v%d" % (t0, t0, hf))
    p("v_lshlrev_b32 v%d, 4, v%d" % (t0, t0))
    p("v_and_b32 v%d, 31, v%d" % (t1, lane))
    p("v_lshlrev_b32 v%d, 8, v%d" % (t1, t1))
    p("v_add_u32 v%d, v%d, v%d" % (t0, t0, t1))
    for s in range(8):
        p("v_xor_b32 v%d, %d, v%d" % (base_v + s, 32 * s, t0))

def gen_k0():
    p = Prog()
    p("""
    s_cmp_ge_u32 s2, 256
    s_cbranch_scc1 K0_end
    s_load_dwordx2 s[4:5], s[0:1], 0
    s_load_dwordx4 s[8:11], s[0:1], 24
    s_load_dwordx2 s[12:13], s[0:1], 56
    v_lshrrev_b32 v1, 6, v0
    v_and_b32 v2, 63, v0
    v_readfirstlane_b32 s40, v1
    s_and_b32 s41, s2, 7
    s_lshr_b32 s42, s2, 3
    s_and_b32 s43, s42, 3
    s_lshr_b32 s44, s42, 2
    s_lshl_b32 s45, s41, 2
    s_add_u32 s45, s45, s43
    s_waitcnt lgkmcnt(0)
    s_lshl_b32 s47, s44, 16
    s_add_u32 s16, s4, s47
    s_addc_u32 s17, s5, 0
    s_mov_b32 s18, 65536
    s_mov_b32 s19, 0x20000
    s_lshl_b32 s47, s45, 8
    s_add_u32 s28, s8, s47
    s_addc_u32 s29, s9, 0
    s_sub_u32 s30, 4194304, s47
    s_mov_b32 s31, 0x20000
    s_mov_b32 s32, s12
    s_mov_b32 s33, s13
    s_mov_b32 s34, 0x%x
    s_mov_b32 s35, 0x20000
    s_mov_b32 s36, s10
    s_mov_b32 s37, s11
    s_mov_b32 s38, 4194304
    s_mov_b32 s39, 0x20000
    v_lshrrev_b32 v4, 5, v2
    v_and_b32 v5, 15, v2
    v_lshrrev_b32 v6, 4, v2
    v_xor_b32 v7, v5, v6
    """ % WS_BYTES)
    for q in range(4):
        p("v_xor_b32 v8, %d, v7" % (4 * q))
        p("v_lshlrev_b32 v8, 4, v8")
        p("v_lshlrev_b32 v9, 10, v6")
        p("v_add_u32 v%d, v8, v9" % (14 + q))
    p("""
    v_lshlrev_b32 v8, 2, v6
    v_xor_b32 v8, v5, v8
    v_lshlrev_b32 v8, 4, v8
    v_lshlrev_b32 v9, 13, v6
    v_add_u32 v19, v8, v9
    v_lshlrev_b32 v9, 10, v6
    v_add_u32 v12, v8, v9
    """)
    lane_consts_k(p, 2, 4, 20, 8)
    lane_consts_tr(p, 2, 4, 32, "W", 56)
    lane_consts_tr(p, 2, 4, 28, "V", 56)
    p("s_lshl_b32 s50, s40, 12")
    p("s_add_u32 s50, s50, 49152")
    p("s_lshl_b32 s51, s2, 14")
    p("s_lshl_b32 s52, s40, 8")
    p("s_add_u32 s51, s51, s52")
    for q in range(4):
        p("s_add_u32 m0, s50, %d" % (q * 1024))
        p("s_add_u32 s52, s51, %d" % (q * 4096))
        p("buffer_load_dwordx4 v12, s[36:39], s52 offen lds")
    for i in range(32):
        p("v_mov_b32 v%d, 0" % (64 + i))
    p("v_mov_b32 v40, v32")
    for w in range(1, 4):
        p("s_cmp_eq_u32 s40, %d" % w)
        p("s_cbranch_scc0 K0_q%d" % w)
        p("v_mov_b32 v40, v%d" % (32 + w))
        p.label("K0_q%d" % w)
    for ch in range(4):
        p("s_lshl_b32 s50, s40, 12")
        p("s_lshl_b32 s51, s40, 14")
        p("s_add_u32 s51, s51, %d" % (ch * 256))
        for q in range(4):
            p("s_add_u32 m0, s50, %d" % (q * 1024))
            p("s_add_u32 s52, s51, %d" % (q * 4096))
            p("buffer_load_dwordx4 v%d, s[16:19], s52 offen lds" % (14 + q))
        p("s_lshl_b32 s50, s40, 13")
        p("s_add_u32 s50, s50, 16384")
        p("s_lshl_b32 s51, s40, 18")
        p("s_add_u32 s51, s51, %d" % (ch * 128 * 8192))
        for q in range(8):
            p("s_add_u32 m0, s50, %d" % (q * 1024))
            p("s_add_u32 s52, s51, %d" % (q * 4 * 8192))
            p("buffer_load_dwordx4 v19, s[28:31], s52 offen lds")
        p("s_waitcnt vmcnt(0)")
        p("s_barrier")
        if ch == 0:
            p("s_lshl_b32 s50, s40, 12")
            p("s_add_u32 s50, s50, 49152")
            p("v_lshlrev_b32 v13, 4, v2")
            for db in range(4):
                p("v_add_u32 v41, s50, v%d" % (28 + db))
                p("ds_read_b64_tr_b16 v[%d:%d], v41" % (96 + 4 * db, 97 + 4 * db))
                p("ds_read_b64_tr_b16 v[%d:%d], v41 offset:2048" % (98 + 4 * db, 99 + 4 * db))
            p("s_waitcnt lgkmcnt(0)")
            p("s_lshl_b32 s50, s40, 20")
            p("s_lshl_b32 s51, s2, 10")
            p("s_add_u32 s50, s50, s51")
            p("s_add_u32 s50, s50, 0x%x" % WOP)
            for db in range(4):
                p("s_add_u32 s51, s50, %d" % (db * 256 * 1024))
                p("buffer_store_dwordx4 %s, v13, s[32:35], s51 offen" % vr(96 + 4 * db, 4))
        for ks in range(8):
            p("ds_read_b64_tr_b16 v[44:45], v40 offset:%d" % (16384 + (16 * ks) * 256))
            p("ds_read_b64_tr_b16 v[46:47], v40 offset:%d" % (16384 + (16 * ks + 4) * 256))
            p("ds_read_b128 v[48:51], v%d" % (20 + ks))
            p("ds_read_b128 v[52:55], v%d offset:8192" % (20 + ks))
            p("s_waitcnt lgkmcnt(0)")
            p("v_mfma_f32_32x32x16_bf16 v[64:79], v[44:47], v[48:51], v[64:79]")
            p("v_mfma_f32_32x32x16_bf16 v[80:95], v[44:47], v[52:55], v[80:95]")
        p("s_barrier")
    p("s_nop 15")
    p("s_mov_b32 s53, 0x%x" % f2u(C_SCALE))
    for i in range(32):
        p("v_mul_f32 v%d, s53, v%d" % (64 + i, 64 + i))
    p("s_lshl_b32 s50, s44, 5")
    p("s_add_u32 s50, s50, s45")
    p("s_lshl_b32 s50, s50, 14")
    p("s_lshl_b32 s51, s40, 12")
    p("s_add_u32 s50, s50, s51")
    for qb in range(2):
        for t in range(2):
            base = 64 + 16 * qb + 8 * t
            d = 96 + 4 * (qb * 2 + t)
            for e in range(4):
                p("v_cvt_pk_bf16_f32 v%d, v%d, v%d" % (d + e, base + 2 * e, base + 2 * e + 1))
            p("buffer_store_dwordx4 %s, v13, s[32:35], s50 offen offset:%d" % (vr(d, 4), (t * 2 + qb) * 1024))
    p("s_waitcnt vmcnt(0)")
    p.label("K0_end")
    p("s_endpgm")
    check_hazards(p.ins, "k0")
    return kernel_block("k0_kernel", render(p.ins), 128, 64, 128)


class ST:
    regs = []
    on = False
    names = []
    sel = None
    clk = False
def st(p, name):
    if not ST.on: return
    r = 70 + 2 * len(ST.regs)
    assert r <= 92
    if ST.sel is not None and name not in ST.sel: return
    ST.regs.append(r); ST.names.append(name)
    p("s_memrealtime s[%d:%d]" % (r, r + 1))
    if ST.clk and name != "start" and name != "end":
        ST.regs.append(r + 2); ST.names.append(name + ".cyc")
        p("s_memtime s[%d:%d]" % (r + 2, r + 3))
def st_finish(p):
    if not ST.on: return
    stamp_store(p, ST.regs, 8, "s24", "K1_nost", 12)
    print("stamps:", ST.names)

def poll(p, label, addr_v, s_base, nonce_lo="s38", nonce_hi="s39", maxit=400000):
    p("s_mov_b32 s44, 0")
    p.label(label)
    p("global_load_dwordx2 v[8:9], %s, %s sc1" % (addr_v, s_base))
    p("s_waitcnt vmcnt(0)")
    p("v_cmp_eq_u32 vcc, %s, v8" % nonce_lo)
    p("v_cmp_eq_u32 s[46:47], %s, v9" % nonce_hi)
    p("s_add_u32 s44, s44, 1")
    p("s_nop 2")
    p("s_and_b64 vcc, vcc, s[46:47]")
    p("s_cmp_eq_u64 vcc, -1")
    p("s_cbranch_scc1 %s_ok" % label)
    p("s_cmp_lt_u32 s44, %d" % maxit)
    p("s_cbranch_scc1 %s" % label)
    p.label(label + "_ok")

def fused_tail(p, fuse, fast, stamps, itst, gmap="4x8"):
    p("v_mov_b32 v7, 0")
    p("s_mov_b32 s44, 0")
    p.label("K1_rdnonce")
    p("global_load_dwordx2 v[8:9], v7, s[10:11] sc1")
    p("s_waitcnt vmcnt(0)")
    p("v_readfirstlane_b32 s38, v8")
    p("v_readfirstlane_b32 s39, v9")
    p("s_add_u32 s44, s44, 1")
    p("s_cmp_lg_u32 s38, 0")
    p("s_cbranch_scc1 K1_nonce_ok")
    p("s_cmp_lt_u32 s44, 400000")
    p("s_cbranch_scc1 K1_rdnonce")
    p.label("K1_nonce_ok")
    st(p, "nonce")
    p("s_nop 7")
    for qb in range(2):
        l = L_V + qb
        p("v_mov_b32 v55, v%d" % l)
        p("s_nop 1")
        p("v_permlane32_swap_b32 v%d, v55" % l)
        p("s_nop 1")
        p("v_add_f32 v%d, v%d, v55" % (57 + 2 * qb, l))
        p("v_sub_f32 v%d, 0, v%d" % (56 + 2 * qb, NEGM + 16 * qb))
    p("""
    s_lshl_b32 s35, s28, 2
    s_add_u32 s35, s35, s24
    s_lshl_b32 s35, s35, 2
    s_add_u32 s35, s35, s27
    s_lshl_b32 s36, s35, 10
    s_add_u32 s36, s36, 0x%x
    s_lshl_b32 s35, s35, 14
    s_add_u32 s35, s35, 0x%x
    v_lshlrev_b32 v14, 3, v2
    """ % (STAT, PART))
    n = 0
    for db in range(4):
        for qb in range(2):
            for t in range(2):
                a0 = O_A + (db * 2 + qb) * 16 + 8 * t
                tv = 64 + (n % 4) * 8
                for e in range(8):
                    p("v_accvgpr_read_b32 v%d, a%d" % (tv + e, a0 + e))
                for e in range(4):
                    p("v_cvt_pk_bf16_f32 v%d, v%d, v%d" % (192 + 4 * n + e, tv + 2 * e, tv + 2 * e + 1))
                n += 1
    st(p, "cvt")
    aux = "sc1"
    p("buffer_store_dwordx2 v[56:57], v14, s[20:23], s36 offen %s" % aux)
    p("buffer_store_dwordx2 v[58:59], v14, s[20:23], s36 offen offset:512 %s" % aux)
    for blk in range(16):
        if blk % 4 == 0 and blk: p("s_add_u32 s35, s35, 4096")
        p("buffer_store_dwordx4 %s, v13, s[20:23], s35 offen offset:%d %s" % (vr(192 + 4 * blk, 4), (blk % 4) * 1024, aux))
    p("s_waitcnt vmcnt(0)")
    p("s_barrier")
    st(p, "x1ack")
    p("""
    s_add_u32 s48, s8, 0x%x
    s_addc_u32 s49, s9, 0
    s_lshl_b32 s45, s28, 9
    s_add_u32 s48, s48, s45
    s_addc_u32 s49, s49, 0
    s_cmp_eq_u32 s24, 0
    s_cbranch_scc0 K1_x1_wait
    s_lshl_b32 s45, s27, 7
    v_mov_b32 v7, s45
    v_mov_b32 v8, s38
    v_mov_b32 v9, s39
    s_mov_b64 exec, 1
    global_store_dwordx2 v7, v[8:9], s[48:49] sc1
    s_mov_b64 exec, -1
    v_and_b32 v7, 3, v2
    v_lshlrev_b32 v7, 7, v7
    """ % FLAGS)
    poll(p, "K1_x1_poll", "v7", "s[48:49]")
    p.label("K1_x1_wait")
    p("s_barrier")
    st(p, "x1poll")
    p("""
    s_lshl_b32 s35, s28, 2
    s_add_u32 s35, s35, s27
    s_lshl_b32 s35, s35, 2
    s_lshl_b32 s36, s35, 10
    s_add_u32 s36, s36, 0x%x
    s_lshl_b32 s35, s35, 14
    s_add_u32 s35, s35, 0x%x
    s_lshl_b32 s45, s24, 12
    s_add_u32 s35, s35, s45
    """ % (STAT, PART))
    combine_body(p, "s35", "s36", aux="sc1")
    st(p, "comb")
    p("""
    s_lshl_b32 s40, s26, 6
    s_lshl_b32 s41, s25, 2
    s_add_u32 s40, s40, s41
    s_add_u32 s40, s40, s27
    s_lshl_b32 s40, s40, 13
    s_lshl_b32 s41, s24, 11
    s_add_u32 s40, s40, s41
    s_add_u32 s40, s40, 0x%x
    s_add_u32 s41, s40, 0x40000
    """ % OF)
    for qb in range(2):
        for t in range(2):
            p("buffer_store_dwordx4 %s, v13, s[20:23], %s offen offset:%d %s" % (vr(160 + (qb * 2 + t) * 4, 4), "s40" if qb == 0 else "s41", t * 1024, "sc1" if fuse >= 2 else ""))
    if fuse < 2:
        p("s_waitcnt vmcnt(0)")
        st(p, "end")
        st_finish(p)
        return
    if gmap == "2x16":
        p("s_and_b32 s50, s2, 7\ns_lshl_b32 s50, s50, 1\ns_lshr_b32 s51, s2, 3\ns_and_b32 s51, s51, 1\ns_add_u32 s50, s50, s51\ns_lshr_b32 s51, s2, 4")
    else:
        p("s_and_b32 s45, s2, 7\ns_lshr_b32 s46, s2, 3\ns_lshr_b32 s50, s45, 1\ns_lshl_b32 s50, s50, 2\ns_and_b32 s47, s46, 3\ns_add_u32 s50, s50, s47")
        p("s_and_b32 s51, s45, 1\ns_lshl_b32 s51, s51, 3\ns_lshr_b32 s47, s46, 2\ns_add_u32 s51, s51, s47")
    p("""
    s_lshl_b32 s52, s51, 18
    s_lshl_b32 s53, s24, 16
    s_add_u32 s52, s52, s53
    s_add_u32 s52, s52, 0x%x
    s_lshl_b32 s54, s50, 18
    s_add_u32 s54, s54, s53
    s_add_u32 s54, s54, 0x%x
    """ % (WOP, OF))
    def rot_off(dst, base, gI):
        p("s_add_u32 %s, s51, %d" % (dst, gI))
        p("s_and_b32 %s, %s, 15" % (dst, dst))
        p("s_lshl_b32 %s, %s, 12" % (dst, dst))
        p("s_add_u32 %s, %s, %s" % (dst, dst, base))
    for gI in range(12):
        rot_off("s55", "s52", gI)
        for q in range(4):
            p("buffer_load_dwordx4 %s, v13, s[20:23], s55 offen offset:%d" % (ar((gI * 4 + q) * 4, 4), q * 1024))
    p("s_waitcnt vmcnt(48)")
    p("s_barrier")
    st(p, "x2ack")
    p("""
    s_add_u32 s48, s8, 0x%x
    s_addc_u32 s49, s9, 0
    s_cmp_eq_u32 s24, 0
    s_cbranch_scc0 K1_x2_wait
    s_lshl_b32 s45, s26, 5
    s_lshl_b32 s46, s25, 2
    s_add_u32 s45, s45, s46
    s_add_u32 s45, s45, s27
    s_lshl_b32 s45, s45, 7
    v_mov_b32 v7, s45
    v_mov_b32 v8, s38
    v_mov_b32 v9, s39
    s_mov_b64 exec, 1
    global_store_dwordx2 v7, v[8:9], s[48:49] sc1
    s_mov_b64 exec, -1
    s_lshr_b32 s45, s50, 1
    s_lshl_b32 s45, s45, 12
    v_and_b32 v7, 31, v2
    v_lshlrev_b32 v7, 7, v7
    v_add_u32 v7, s45, v7
    """ % (FLAGS + 0x10000))
    poll(p, "K1_x2_poll", "v7", "s[48:49]")
    p.label("K1_x2_wait")
    p("s_barrier")
    st(p, "x2poll")
    for gI in range(12, 16):
        rot_off("s55", "s52", gI)
        for q in range(4):
            p("buffer_load_dwordx4 %s, v13, s[20:23], s55 offen offset:%d" % (ar((gI * 4 + q) * 4, 4), q * 1024))
    NB = 44
    def bload(i):
        gI, q = i // 4, i % 4
        if q == 0: rot_off("s56", "s54", gI)
        p("buffer_load_dwordx4 %s, v13, s[20:23], s56 offen offset:%d sc1" % (vr(64 + 4 * (i % NB), 4), q * 1024))
    for i in range(NB): bload(i)
    issued = NB
    for i in range(64):
        p("s_waitcnt vmcnt(%d)" % min(63, issued - 1 - i))
        c = "0" if i == 0 else "v[16:31]"
        p("v_mfma_f32_32x32x16_bf16 v[16:31], %s, %s, %s" % (ar(4 * i, 4), vr(64 + 4 * (i % NB), 4), c))
        if issued < 64 and i >= 1 and issued - NB <= i - 1:
            bload(issued); issued += 1
    st(p, "gmfma")
    p("s_nop 15")
    p("s_lshl_b32 s46, s24, 12")
    p("v_add_u32 v14, s46, v13")
    for j in range(4):
        p("ds_write_b128 v14, %s offset:%d" % (vr(16 + 4 * j, 4), j * 1024))
    p("s_waitcnt lgkmcnt(0)")
    p("s_barrier")
    p("s_lshl_b32 s46, s24, 10")
    p("v_add_u32 v14, s46, v13")
    for w in range(4):
        p("ds_read_b128 %s, v14 offset:%d" % (vr(64 + 4 * w, 4), w * 4096))
    p("s_load_dwordx2 s[6:7], s[0:1], 40")
    p("s_waitcnt lgkmcnt(0)")
    for i in range(4):
        p("v_add_f32 v%d, v%d, v%d" % (64 + i, 64 + i, 68 + i))
        p("v_add_f32 v%d, v%d, v%d" % (72 + i, 72 + i, 76 + i))
        p("v_add_f32 v%d, v%d, v%d" % (64 + i, 64 + i, 72 + i))
    p("v_cvt_pk_bf16_f32 v80, v64, v65")
    p("v_cvt_pk_bf16_f32 v81, v66, v67")
    p("""
    s_lshl_b32 s43, s50, 15
    s_add_u32 s16, s6, s43
    s_addc_u32 s17, s7, 0
    s_mov_b32 s18, 32768
    s_mov_b32 s19, 0x20000
    s_lshl_b32 s46, s51, 6
    s_lshl_b32 s47, s24, 4
    s_add_u32 s46, s46, s47
    v_and_b32 v3, 31, v2
    v_lshrrev_b32 v4, 5, v2
    v_lshlrev_b32 v5, 10, v3
    v_lshlrev_b32 v6, 3, v4
    v_add_u32 v5, v5, v6
    buffer_store_dwordx2 v[80:81], v5, s[16:19], s46 offen
    s_waitcnt vmcnt(0)
    """)
    st(p, "end")
    st_finish(p)

NT = 16
S_BUF = [64, 96]
P_BUF = [128, 144]
NEGM = 160
O_A = 0
Q_A = 128
KF_A = 192
VF_A = 224
TMP = 40
TS = [48, 50]
L_V = 52
KADDR = [16, 24]
VADDR = [32, 36]

def gen_k1(D=3, LA=3, aux="nt", stamps=False, thr=4096.0, novalu=False, nods=False, nodma=False, nobar=False, cyc=False, itst=False, quiet=False, fuse=0, fast=False, tst=False):
    NS = D + 2
    p = Prog()
    ST.regs = []; ST.names = []; ST.on = bool(fuse and stamps)
    if ST.on: stamps = False
    p("""
    s_cmp_ge_u32 s2, 256
    s_cbranch_scc1 K1_end
    s_load_dwordx4 s[4:7], s[0:1], 8
    s_load_dwordx2 s[8:9], s[0:1], 56
    """)
    if stamps: p("s_memrealtime s[70:71]")
    st(p, "start")
    p("""
    v_lshrrev_b32 v1, 6, v0
    v_and_b32 v2, 63, v0
    v_readfirstlane_b32 s24, v1
    s_and_b32 s25, s2, 7
    s_lshr_b32 s26, s2, 3
    s_and_b32 s27, s26, 3
    s_lshr_b32 s26, s26, 2
    s_lshl_b32 s28, s26, 3
    s_add_u32 s28, s28, s25
    s_lshl_b32 s33, s28, 19
    s_lshl_b32 s29, s27, 17
    s_lshl_b32 s30, s24, 11
    s_add_u32 s29, s29, s30
    s_mov_b32 s32, 0x%x
    v_lshrrev_b32 v4, 5, v2
    v_and_b32 v5, 15, v2
    v_lshrrev_b32 v6, 4, v2
    v_lshlrev_b32 v13, 4, v2
    s_waitcnt lgkmcnt(0)
    s_add_u32 s12, s4, s33
    s_addc_u32 s13, s5, 0
    s_mov_b32 s14, 524288
    s_mov_b32 s15, 0x20000
    s_add_u32 s16, s6, s33
    s_addc_u32 s17, s7, 0
    s_mov_b32 s18, 524288
    s_mov_b32 s19, 0x20000
    s_mov_b32 s20, s8
    s_mov_b32 s21, s9
    s_mov_b32 s22, 0x%x
    s_mov_b32 s23, 0x20000
    """ % (f2u(thr), WS_BYTES))
    if fuse:
        p("s_load_dwordx2 s[10:11], s[0:1], 48")
        p("s_getreg_b32 s37, hwreg(HW_REG_XCC_ID)")
        p("s_and_b32 s37, s37, 15")
        p("s_waitcnt lgkmcnt(0)")
        p("s_cmp_eq_u32 s2, 0")
        p("s_cbranch_scc0 K1_nonce_done")
        p("s_cmp_eq_u32 s24, 0")
        p("s_cbranch_scc0 K1_nonce_done")
        p("s_memrealtime s[38:39]")
        p("s_waitcnt lgkmcnt(0)")
        p("s_or_b32 s38, s38, 1")
        p("v_mov_b32 v8, s38\nv_mov_b32 v9, s39\nv_mov_b32 v7, 0")
        p("s_mov_b64 exec, 1")
        p("global_store_dwordx2 v7, v[8:9], s[10:11] sc1")
        p("s_mov_b64 exec, -1")
        p.label("K1_nonce_done")
    p("""
    v_xor_b32 v7, v5, v6
    s_and_b32 s34, s24, 1
    s_lshl_b32 s34, s34, 3
    v_xor_b32 v8, s34, v7
    v_lshlrev_b32 v9, 8, v6
    v_lshlrev_b32 v10, 4, v8
    v_add_u32 v10, v10, v9
    v_xor_b32 v8, 4, v8
    v_lshlrev_b32 v11, 4, v8
    v_add_u32 v11, v11, v9
    v_lshlrev_b32 v8, 2, v6
    v_xor_b32 v8, v5, v8
    v_lshlrev_b32 v12, 4, v8
    v_add_u32 v12, v12, v9
    """)
    p("""
    s_lshl_b32 s35, s26, 5
    s_lshl_b32 s36, s25, 2
    s_add_u32 s35, s35, s36
    s_add_u32 s35, s35, s24
    s_lshl_b32 s35, s35, 14
    """)
    for f in range(16):
        if f % 4 == 0 and f: p("s_add_u32 s35, s35, 4096")
        p("buffer_load_dwordx4 %s, v13, s[20:23], s35 offen offset:%d" % (ar(Q_A + 4 * f, 4), (f % 4) * 1024))
    def dma(tile):
        slot = tile % NS
        return [
            [I("s_add_u32 s31, s29, %d" % (tile * 8192)), I("s_add_u32 m0, s30, %d" % (slot * 16384)), I("s_nop 0") if False else None,
             I("buffer_load_dwordx4 v10, s[12:15], s31 offen %s lds" % aux)],
            [I("buffer_load_dwordx4 v11, s[12:15], s31 offen offset:1024 %s lds" % aux)],
            [I("s_add_u32 m0, s30, %d" % (slot * 16384 + 8192)), I("s_nop 0"),
             I("buffer_load_dwordx4 v12, s[16:19], s31 offen %s lds" % aux)],
            [I("buffer_load_dwordx4 v12, s[16:19], s31 offen offset:1024 %s lds" % aux)],
        ]
    def flat(L): return [x for g in L for x in g if x is not None]
    def dma(tile):
        slot = tile % NS
        return [
            [I("s_add_u32 m0, s30, %d" % (slot * 16384)), I("s_add_u32 s31, s29, %d" % (tile * 8192)),
             I("buffer_load_dwordx4 v10, s[12:15], s31 offen %s lds" % aux)],
            [I("buffer_load_dwordx4 v11, s[12:15], s31 offen offset:1024 %s lds" % aux)],
            [I("s_add_u32 m0, s30, %d" % (slot * 16384 + 8192)), I("s_nop 0"),
             I("buffer_load_dwordx4 v12, s[16:19], s31 offen %s lds" % aux)],
            [I("buffer_load_dwordx4 v12, s[16:19], s31 offen offset:1024 %s lds" % aux)],
        ]
    for t in range(D):
        p.extend(flat(dma(t)))
    lane_consts_k(p, 2, 4, KADDR[0], 8)
    for s in range(8):
        p("v_add_u32 v%d, 0x10000, v%d" % (KADDR[1] + s, KADDR[0] + s))
    lane_consts_tr(p, 2, 4, VADDR[0], "V", 56)
    for d in range(4):
        p("v_add_u32 v%d, 0x10000, v%d" % (VADDR[1] + d, VADDR[0] + d))
    p("v_mov_b32 v%d, 0\nv_mov_b32 v%d, 0" % (L_V, L_V + 1))

    def kread(tile, s):
        off = (tile % NS) * 16384
        hi = off >= 65536
        return I("ds_read_b128 %s, v%d offset:%d" % (ar(KF_A + 4 * s, 4), KADDR[hi] + s, off - 65536 * hi), ds=("K", tile, s))
    def vread(tile, k):
        db, t = k & 3, k >> 2
        off = (tile % NS) * 16384 + 8192 + t * 4096
        hi = off >= 65536
        off -= 65536 * hi
        f = VF_A + 4 * k
        return [I("ds_read_b64_tr_b16 %s, v%d offset:%d" % (ar(f, 2), VADDR[hi] + db, off), ds=("V", tile, k)),
                I("ds_read_b64_tr_b16 %s, v%d offset:%d" % (ar(f + 2, 2), VADDR[hi] + db, off + 2048), ds=("V", tile, k))]
    def qk_mfma(tile, s, qb, cinit):
        S = S_BUF[tile & 1] + 16 * qb
        c = cinit if s == 0 else vr(S, 16)
        return I("v_mfma_f32_32x32x16_bf16 %s, %s, %s, %s" % (vr(S, 16), ar(KF_A + 4 * s, 4), ar(Q_A + (s * 2 + qb) * 4, 4), c), needs=[("K", tile, s)])
    def pv_mfma(tile, k, qb):
        db, t = k & 3, k >> 2
        o = O_A + (db * 2 + qb) * 16
        c = "0" if (tile == 0 and t == 0) else ar(o, 16)
        return I("v_mfma_f32_32x32x16_bf16 %s, %s, %s, %s" % (ar(o, 16), ar(VF_A + 4 * k, 4), vr(P_BUF[tile & 1] + (qb * 2 + t) * 4, 4), c), needs=[("V", tile, k)])

    p("s_waitcnt vmcnt(%d)" % (4 * (D - 1)))
    p("s_barrier")
    if stamps: p("s_memrealtime s[72:73]")
    st(p, "bar0")
    if cyc: p("s_memtime s[78:79]")
    for s in range(8): p.add(kread(0, s))
    for s in range(8):
        for qb in range(2):
            p.add(qk_mfma(0, s, qb, "0"))
    p("s_nop 15")
    for qb in range(2):
        S = S_BUF[0] + 16 * qb
        p("v_max3_f32 v54, v%d, v%d, v%d" % (S, S + 1, S + 2))
        for i in range(3, 15, 2):
            p("v_max3_f32 v54, v54, v%d, v%d" % (S + i, S + i + 1))
        p("v_max_f32 v54, v54, v%d" % (S + 15))
        p("v_mov_b32 v55, v54")
        p("s_nop 1")
        p("v_permlane32_swap_b32 v54, v55")
        p("s_nop 1")
        p("v_max_f32 v54, v54, v55")
        p("v_sub_f32 v54, 0, v54")
        for i in range(16):
            p("v_mov_b32 v%d, v54" % (NEGM + 16 * qb + i))
        for i in range(16):
            p("v_add_f32 v%d, v%d, v54" % (S + i, S + i))

    ORDER = [("P", 0), ("P", 1), ("Q", 0), ("P", 2), ("Q", 1), ("P", 3), ("Q", 2), ("P", 4), ("Q", 3), ("P", 5), ("Q", 4), ("P", 6), ("Q", 5), ("Q", 6), ("Q", 7), ("P", 7)]
    pairs = []
    first_pos = {}
    for it in range(NT + 1):
        first_pos[it] = len(pairs)
        for kind, k in ORDER:
            if kind == "P" and it - 1 < 0: continue
            if kind == "Q" and it + 1 > NT - 1: continue
            pairs.append((it, kind, k))
    N = len(pairs)
    reads_at = {x: [] for x in range(-1, N)}
    for x, (it, kind, k) in enumerate(pairs):
        pos = x - LA
        if kind == "Q":
            if pos < first_pos[it]: pos = ("start", it)
        else:
            pos = max(pos, -1)
            if pos == -1: pos = ("start", 0) if it == 1 else pos
        rd = [kread(it + 1, k)] if kind == "Q" else vread(it - 1, k)
        if isinstance(pos, tuple): reads_at.setdefault(pos, []).extend(rd)
        else: reads_at[pos].extend(rd)

    def softmax_queue(tile):
        S = S_BUF[tile & 1]; P = P_BUF[tile & 1]; ts = TS[tile & 1]
        q = []
        def E(e): return I("v_exp_f32 v%d, v%d" % (TMP + e % 8, S + e))
        def A(e):
            qb, r = e >> 4, e & 15
            if r == 0: return None
            if r == 1: return I("v_add_f32 v%d, v%d, v%d" % (ts + qb, TMP + (e - 1) % 8, TMP + e % 8))
            return I("v_add_f32 v%d, v%d, v%d" % (ts + qb, ts + qb, TMP + e % 8))
        def C(e):
            if e % 2 == 0: return None
            qb, r = e >> 4, e & 15
            return I("v_cvt_pk_bf16_f32 v%d, v%d, v%d" % (P + (qb * 2 + (r >> 3)) * 4 + ((r & 7) >> 1), TMP + (e - 1) % 8, TMP + e % 8))
        for e in range(32):
            q.append(E(e))
            if e >= 1:
                q += [x for x in (A(e - 1), C(e - 1)) if x]
        q.append(I("s_nop 0"))
        q += [x for x in (A(31), C(31)) if x]
        q.append(I("v_max_f32 v54, v%d, v%d" % (ts, ts + 1)))
        q.append(I("v_cmp_lt_f32 vcc, s32, v54"))
        return q

    x = 0
    for it in range(NT + 1):
        its = [pp for pp in pairs if pp[0] == it]
        if it >= 1 and it - 1 <= NT - 1:
            if not novalu: p("s_cbranch_vccnz K1_stub%d" % (it - 1))
            p.label("K1_back%d" % (it - 1))
        if it + 1 <= NT - 1:
            last_issued = min(NT - 1, it - 1 + D) if it >= 1 else D - 1
            n = 4 * max(0, last_issued - (it + 1))
            if not nodma: p("s_waitcnt vmcnt(%d)" % n)
            if not nobar: p("s_barrier")
        if itst and it % 2 == 0:
            k = it // 2
            p("s_memrealtime s[%d:%d]" % (38 + 4 * k if k < 6 else 64 + 4 * (k - 6) + 18, (38 + 4 * k if k < 6 else 64 + 4 * (k - 6) + 18) + 1))
            p("s_memtime s[%d:%d]" % ((38 + 4 * k if k < 6 else 64 + 4 * (k - 6) + 18) + 2, (38 + 4 * k if k < 6 else 64 + 4 * (k - 6) + 18) + 3))
        p.extend(reads_at.get(("start", it), []))
        vq = []
        if it >= 1:
            ts = TS[(it - 1) & 1]
            vq += [I("v_add_f32 v%d, v%d, v%d" % (L_V + qb, L_V + qb, ts + qb)) for qb in range(2)]
        if it <= NT - 1 and not novalu:
            vq += softmax_queue(it)
        dq = dma(it + D) if (it + D <= NT - 1 and not nodma) else []
        dq = [[y for y in g if y is not None] for g in dq]
        npair = len(its)
        for j, (_, kind, k) in enumerate(its):
            ms = [qk_mfma(it + 1, k, qb, vr(NEGM + 16 * qb, 16)) for qb in range(2)] if kind == "Q" else [pv_mfma(it - 1, k, qb) for qb in range(2)]
            rds = list(reads_at[x])
            fixed = [[], []]
            fixed[0] += rds[:2]; fixed[1] += rds[2:]
            if dq and j >= 1 and j % 2 == 1:
                fixed[1] += dq.pop(0)
            for gi in range(2):
                p.add(ms[gi])
                budget = 24 - sum(y.cost for y in fixed[gi]) - (4 if gi == 1 else 0)
                p.extend(fixed[gi])
                remaining_gaps = (npair - j) * 2 - gi
                while vq and (budget >= vq[0].cost or remaining_gaps == 1):
                    y = vq.pop(0); p.add(y); budget -= y.cost
            x += 1
        while dq:
            p.extend(dq.pop(0))
        while vq:
            p.add(vq.pop(0))
    if stamps: p("s_memrealtime s[74:75]")
    st(p, "loopend")
    if cyc: p("s_memtime s[80:81]")
    if fuse:
        fused_tail(p, fuse, fast, stamps or tst, itst)
    else:
        p("s_nop 15")
        for qb in range(2):
            l = L_V + qb
            p("v_mov_b32 v55, v%d" % l)
            p("s_nop 1")
            p("v_permlane32_swap_b32 v%d, v55" % l)
            p("s_nop 1")
            p("v_add_f32 v%d, v%d, v55" % (57 + 2 * qb, l))
            p("v_sub_f32 v%d, 0, v%d" % (56 + 2 * qb, NEGM + 16 * qb))
        p("""
        s_lshl_b32 s35, s28, 2
        s_add_u32 s35, s35, s24
        s_lshl_b32 s35, s35, 2
        s_add_u32 s35, s35, s27
        s_lshl_b32 s36, s35, 10
        s_add_u32 s36, s36, 0x%x
        s_lshl_b32 s35, s35, 14
        s_add_u32 s35, s35, 0x%x
        v_lshlrev_b32 v14, 3, v2
        buffer_store_dwordx2 v[56:57], v14, s[20:23], s36 offen
        buffer_store_dwordx2 v[58:59], v14, s[20:23], s36 offen offset:512
        """ % (STAT, PART))
        n = 0
        for db in range(4):
            for qb in range(2):
                for t in range(2):
                    a0 = O_A + (db * 2 + qb) * 16 + 8 * t
                    tv = 192 + (n % 4) * 12
                    for e in range(8):
                        p("v_accvgpr_read_b32 v%d, a%d" % (tv + e, a0 + e))
                    for e in range(4):
                        p("v_cvt_pk_bf16_f32 v%d, v%d, v%d" % (tv + 8 + e, tv + 2 * e, tv + 2 * e + 1))
                    blk = (db * 2 + qb) * 2 + t
                    if blk % 4 == 0 and blk: p("s_add_u32 s35, s35, 4096")
                    p("buffer_store_dwordx4 %s, v13, s[20:23], s35 offen offset:%d" % (vr(tv + 8, 4), (blk % 4) * 1024))
                    n += 1
        p("s_waitcnt vmcnt(0)")
        if stamps:
            p("s_memrealtime s[76:77]")
            if cyc:
                p("s_waitcnt lgkmcnt(0)")
                p("s_sub_u32 s80, s80, s78\ns_subb_u32 s81, s81, s79\ns_add_u32 s76, s70, s80\ns_addc_u32 s77, s71, 0")
            if itst:
                regs = []
                for k in range(9):
                    b = 38 + 4 * k if k < 6 else 64 + 4 * (k - 6) + 18
                    regs += [b, b + 2]
                stamp_store(p, [70] + regs + [76], 8, "s24", "K1_nost", 20)
            else:
                stamp_store(p, [70, 72, 74, 76], 8, "s24", "K1_nost", 4)

    p("s_branch K1_end")
    for it in range(NT):
        p.label("K1_stub%d" % it)
        p("s_call_b64 s[62:63], K1_rare%d" % (it & 1))
        p("s_branch K1_back%d" % it)
    for par in range(2):
        S = S_BUF[par]; Sn = S_BUF[par ^ 1]; P = P_BUF[par]; ts = TS[par]
        p.label("K1_rare%d" % par)
        p("s_nop 15\ns_nop 15")
        for qb in range(2):
            Sq = S + 16 * qb
            p("v_max3_f32 v54, v%d, v%d, v%d" % (Sq, Sq + 1, Sq + 2))
            for i in range(3, 15, 2):
                p("v_max3_f32 v54, v54, v%d, v%d" % (Sq + i, Sq + i + 1))
            p("v_max_f32 v54, v54, v%d" % (Sq + 15))
            p("v_mov_b32 v55, v54")
            p("s_nop 1")
            p("v_permlane32_swap_b32 v54, v55")
            p("s_nop 1")
            p("v_max3_f32 v54, v54, v55, 0")
            p("v_sub_f32 v55, 0, v54")
            p("v_exp_f32 v55, v55")
            for i in range(16):
                p("v_sub_f32 v%d, v%d, v54" % (NEGM + 16 * qb + i, NEGM + 16 * qb + i))
                p("v_sub_f32 v%d, v%d, v54" % (Sq + i, Sq + i))
                p("v_sub_f32 v%d, v%d, v54" % (Sn + 16 * qb + i, Sn + 16 * qb + i))
            p("v_mul_f32 v%d, v%d, v55" % (L_V + qb, L_V + qb))
            for db in range(4):
                for r in range(16):
                    a = O_A + (db * 2 + qb) * 16 + r
                    p("v_accvgpr_read_b32 v56, a%d" % a)
                    p("v_mul_f32 v56, v56, v55")
                    p("v_accvgpr_write_b32 a%d, v56" % a)
            for i in range(16):
                p("v_exp_f32 v%d, v%d" % (192 + i, Sq + i))
            p("s_nop 0")
            p("v_add_f32 v%d, v192, v193" % (ts + qb))
            for i in range(2, 16):
                p("v_add_f32 v%d, v%d, v%d" % (ts + qb, ts + qb, 192 + i))
            for e in range(8):
                r = 2 * e
                p("v_cvt_pk_bf16_f32 v%d, v%d, v%d" % (P + (qb * 2 + (r >> 3)) * 4 + ((r & 7) >> 1), 192 + r, 193 + r))
        p("s_nop 7")
        p("s_setpc_b64 s[62:63]")
    p.label("K1_end")
    p("s_endpgm")
    if nods:
        keep = []
        inmain = False
        for y in p.ins:
            if y.label and y.t.startswith("K1_back0"): inmain = True
            if inmain and y.t.startswith("ds_read"): continue
            if inmain: y.needs = []
            keep.append(y)
        p.ins = keep
    ins = insert_lgkm(p.ins)
    if not quiet: check_hazards(ins, "k1")
    return kernel_block("k1_kernel", render(ins), 512, 102, 256), NS * 16384

def gen_k1b():
    p = Prog()
    p("""
    s_cmp_ge_u32 s2, 256
    s_cbranch_scc1 C_end
    s_load_dwordx2 s[8:9], s[0:1], 56
    v_lshrrev_b32 v1, 6, v0
    v_and_b32 v2, 63, v0
    v_readfirstlane_b32 s24, v1
    s_and_b32 s25, s2, 7
    s_lshr_b32 s26, s2, 3
    s_and_b32 s27, s26, 3
    s_lshr_b32 s26, s26, 2
    s_lshl_b32 s28, s26, 3
    s_add_u32 s28, s28, s25
    v_lshlrev_b32 v13, 4, v2
    v_lshlrev_b32 v14, 3, v2
    s_waitcnt lgkmcnt(0)
    s_mov_b32 s20, s8
    s_mov_b32 s21, s9
    s_mov_b32 s22, 0x%x
    s_mov_b32 s23, 0x20000
    s_lshl_b32 s35, s28, 2
    s_add_u32 s35, s35, s27
    s_lshl_b32 s35, s35, 2
    s_lshl_b32 s36, s35, 10
    s_add_u32 s36, s36, 0x%x
    s_lshl_b32 s35, s35, 14
    s_add_u32 s35, s35, 0x%x
    s_lshl_b32 s37, s24, 12
    s_add_u32 s35, s35, s37
    """ % (WS_BYTES, STAT, PART))
    combine_body(p, "s35", "s36")
    p("""
    s_lshl_b32 s37, s26, 6
    s_lshl_b32 s38, s25, 2
    s_add_u32 s37, s37, s38
    s_add_u32 s37, s37, s27
    s_lshl_b32 s37, s37, 13
    s_lshl_b32 s38, s24, 11
    s_add_u32 s37, s37, s38
    s_add_u32 s37, s37, 0x%x
    s_add_u32 s38, s37, 0x40000
    """ % OF)
    for qb in range(2):
        for t in range(2):
            p("buffer_store_dwordx4 %s, v13, s[20:23], %s offen offset:%d" % (vr(160 + (qb * 2 + t) * 4, 4), "s37" if qb == 0 else "s38", t * 1024))
    p("s_waitcnt vmcnt(0)")
    p.label("C_end")
    p("s_endpgm")
    check_hazards(p.ins, "k1b")
    return kernel_block("k1b_kernel", render(p.ins), 256, 64, 256)

def combine_body(p, spart, sstat, aux=""):
    for s in range(4):
        p("s_add_u32 s40, %s, %d" % (sstat, s * 1024))
        for qb in range(2):
            p("buffer_load_dwordx2 %s, v14, s[20:23], s40 offen offset:%d %s" % (vr(16 + (s * 2 + qb) * 2, 2), qb * 512, aux))
    for s in range(4):
        p("s_add_u32 s40, %s, %d" % (spart, s * 16384))
        for f in range(4):
            p("buffer_load_dwordx4 %s, v13, s[20:23], s40 offen offset:%d %s" % (vr(64 + (s * 4 + f) * 4, 4), f * 1024, aux))
    p("s_waitcnt vmcnt(16)")
    for qb in range(2):
        m = lambda s: 16 + (s * 2 + qb) * 2
        p("v_max3_f32 v32, v%d, v%d, v%d" % (m(0), m(1), m(2)))
        p("v_max_f32 v32, v32, v%d" % m(3))
        for s in range(4): p("v_sub_f32 v%d, v%d, v32" % (40 + s * 2 + qb, m(s)))
        for s in range(4): p("v_exp_f32 v%d, v%d" % (40 + s * 2 + qb, 40 + s * 2 + qb))
        p("s_nop 0")
        p("v_mul_f32 v33, v%d, v%d" % (40 + qb, m(0) + 1))
        for s in range(1, 4): p("v_fmac_f32 v33, v%d, v%d" % (40 + s * 2 + qb, m(s) + 1))
        p("v_rcp_f32 v33, v33")
        p("s_nop 0")
        for s in range(4): p("v_mul_f32 v%d, v%d, v33" % (40 + s * 2 + qb, 40 + s * 2 + qb))
    p("s_waitcnt vmcnt(0)")
    for f in range(4):
        qb = f >> 1
        for d in range(4):
            lo, hi = 128 + 2 * d, 129 + 2 * d
            for s in range(4):
                src = 64 + (s * 4 + f) * 4 + d
                p("v_lshlrev_b32 v36, 16, v%d" % src)
                p("v_and_b32 v37, 0xffff0000, v%d" % src)
                if s == 0:
                    p("v_mul_f32 v%d, v36, v%d" % (lo, 40 + qb))
                    p("v_mul_f32 v%d, v37, v%d" % (hi, 40 + qb))
                else:
                    p("v_fmac_f32 v%d, v36, v%d" % (lo, 40 + s * 2 + qb))
                    p("v_fmac_f32 v%d, v37, v%d" % (hi, 40 + s * 2 + qb))
            p("v_cvt_pk_bf16_f32 v%d, v%d, v%d" % (160 + f * 4 + d, lo, hi))

def gen_k2():
    p = Prog()
    p("""
    s_cmp_ge_u32 s2, 256
    s_cbranch_scc1 G_end
    s_load_dwordx2 s[6:7], s[0:1], 40
    s_load_dwordx2 s[8:9], s[0:1], 56
    v_lshrrev_b32 v1, 6, v0
    v_and_b32 v2, 63, v0
    v_readfirstlane_b32 s24, v1
    s_lshr_b32 s25, s2, 4
    s_and_b32 s26, s2, 15
    v_lshlrev_b32 v13, 4, v2
    s_waitcnt lgkmcnt(0)
    s_mov_b32 s20, s8
    s_mov_b32 s21, s9
    s_mov_b32 s22, 0x%x
    s_mov_b32 s23, 0x20000
    s_lshl_b32 s43, s25, 15
    s_add_u32 s16, s6, s43
    s_addc_u32 s17, s7, 0
    s_mov_b32 s18, 32768
    s_mov_b32 s19, 0x20000
    s_lshl_b32 s30, s26, 18
    s_lshl_b32 s31, s24, 16
    s_add_u32 s30, s30, s31
    s_add_u32 s30, s30, 0x%x
    s_lshl_b32 s32, s25, 18
    s_add_u32 s32, s32, s31
    s_add_u32 s32, s32, 0x%x
    """ % (WS_BYTES, WOP, OF))
    for i in range(16): p("v_mov_b32 v%d, 0" % (64 + i))
    for bt in range(4):
        for f in range(16):
            ks = bt * 16 + f
            if ks % 4 == 0:
                p("s_add_u32 s33, s30, %d" % (ks * 1024))
                p("s_add_u32 s34, s32, %d" % (ks * 1024))
            p("buffer_load_dwordx4 %s, v13, s[20:23], s33 offen offset:%d" % (vr(96 + 4 * f, 4), (ks % 4) * 1024))
            p("buffer_load_dwordx4 %s, v13, s[20:23], s34 offen offset:%d" % (vr(160 + 4 * f, 4), (ks % 4) * 1024))
        for f in range(16):
            p("s_waitcnt vmcnt(%d)" % (2 * (15 - f)))
            p("v_mfma_f32_32x32x16_bf16 v[64:79], %s, %s, v[64:79]" % (vr(96 + 4 * f, 4), vr(160 + 4 * f, 4)))
        p("s_nop 7")
    p("s_nop 15")
    p("s_lshl_b32 s46, s24, 12")
    p("v_add_u32 v14, s46, v13")
    for j in range(4):
        p("ds_write_b128 v14, %s offset:%d" % (vr(64 + 4 * j, 4), j * 1024))
    p("s_waitcnt lgkmcnt(0)")
    p("s_barrier")
    p("s_lshl_b32 s46, s24, 10")
    p("v_add_u32 v14, s46, v13")
    for w in range(4):
        p("ds_read_b128 %s, v14 offset:%d" % (vr(64 + 4 * w, 4), w * 4096))
    p("s_waitcnt lgkmcnt(0)")
    for i in range(4):
        p("v_add_f32 v%d, v%d, v%d" % (64 + i, 64 + i, 68 + i))
        p("v_add_f32 v%d, v%d, v%d" % (72 + i, 72 + i, 76 + i))
        p("v_add_f32 v%d, v%d, v%d" % (64 + i, 64 + i, 72 + i))
    p("v_cvt_pk_bf16_f32 v80, v64, v65")
    p("v_cvt_pk_bf16_f32 v81, v66, v67")
    p("""
    s_lshl_b32 s46, s26, 6
    s_lshl_b32 s47, s24, 4
    s_add_u32 s46, s46, s47
    v_and_b32 v3, 31, v2
    v_lshrrev_b32 v4, 5, v2
    v_lshlrev_b32 v5, 10, v3
    v_lshlrev_b32 v6, 3, v4
    v_add_u32 v5, v5, v6
    buffer_store_dwordx2 v[80:81], v5, s[16:19], s46 offen
    s_waitcnt vmcnt(0)
    """)
    p.label("G_end")
    p("s_endpgm")
    check_hazards(p.ins, "k2")
    return kernel_block("k2_kernel", render(p.ins), 256, 64, 256)

def build_v0(**kw):
    k1, lds1 = gen_k1(**kw)
    launches = [("k0_kernel", (256, 1, 1), (256, 1, 1), 65536), ("k1_kernel", (256, 1, 1), (256, 1, 1), max(lds1, 84 * 1024)),
                ("k1b_kernel", (256, 1, 1), (256, 1, 1), 0), ("k2_kernel", (256, 1, 1), (256, 1, 1), 16384)]
    return full_file(launches, [gen_k0(), k1, gen_k1b(), gen_k2()])

def build_v1(**kw):
    k1, lds1 = gen_k1(fuse=1, **kw)
    launches = [("k0_kernel", (256, 1, 1), (256, 1, 1), 65536), ("k1_kernel", (256, 1, 1), (256, 1, 1), max(lds1, 84 * 1024)),
                ("k2_kernel", (256, 1, 1), (256, 1, 1), 16384)]
    return full_file(launches, [gen_k0(), k1, gen_k2()])

def build_v2(**kw):
    k1, lds1 = gen_k1(fuse=2, **kw)
    launches = [("k0_kernel", (256, 1, 1), (256, 1, 1), 65536), ("k1_kernel", (256, 1, 1), (256, 1, 1), max(lds1, 84 * 1024))]
    return full_file(launches, [gen_k0(), k1])

def build_k01(**kw):
    k1, lds1 = gen_k1(**kw)
    return full_file([("k0_kernel", (256, 1, 1), (256, 1, 1), 65536), ("k1_kernel", (256, 1, 1), (256, 1, 1), max(lds1, 84 * 1024))], [gen_k0(), k1])

def build_k1only(**kw):
    k1, lds1 = gen_k1(**kw)
    return full_file([("k1_kernel", (256, 1, 1), (256, 1, 1), max(lds1, 84 * 1024))], [k1])

if __name__ == "__main__":
    open("v2.s", "w").write(build_v2(D=6))
    open("v2_st.s", "w").write(build_v2(D=6, stamps=True))
    ST.sel = ["start", "loopend", "cvt", "x1poll", "comb", "gmfma", "end"]; ST.clk = True
    open("v2_clk.s", "w").write(build_v2(D=6, stamps=True))
```

```python
import math, struct, sys
from asmlib import kernel_block, full_file, NAME
from fw import *
from gen import f2u, C_SCALE, vr, ar, lane_consts_tr, lane_consts_k

QF, WOP, PART, OF, FLAGS = 0x0, 0x400000, 0x800000, 0x2000000, 0x2800000
PBLK = 0x4400
F_X1, F_X2, F_EARLY, F_X0, F_WOP = FLAGS, FLAGS + 0x10000, FLAGS + 0x20000, FLAGS + 0x30000, FLAGS + 0x40000
WS_BYTES = 0x3000000
STAMP = 0x8000000

class ST:
    regs = []; names = []; on = False; sel = None
def st(p, name):
    if not ST.on: return
    if ST.sel is not None and name not in ST.sel: return
    r = 70 + 2 * len(ST.regs)
    assert r <= 92, "too many stamps"
    ST.regs.append(r); ST.names.append(name)
    p("s_memrealtime s[%d:%d]" % (r, r + 1))
def st_finish(p, ws, wave, label):
    if not ST.on: return
    p("s_waitcnt lgkmcnt(0)")
    p("s_cmp_eq_u32 %s, 0" % wave)
    p("s_cbranch_scc0 %s" % label)
    p("s_mul_i32 s94, s2, 96")
    p("s_add_u32 s96, s%d, 0x%x\ns_addc_u32 s97, s%d, 0" % (ws, STAMP, ws + 1))
    p("s_add_u32 s96, s96, s94\ns_addc_u32 s97, s97, 0\nv_mov_b32 v2, 0")
    regs = ST.regs + [ST.regs[-1]] * (12 - len(ST.regs))
    for i, r in enumerate(regs):
        p("v_mov_b32 v4, s%d\nv_mov_b32 v5, s%d" % (r, r + 1))
        p("global_store_dwordx2 v2, v[4:5], s[96:97] offset:%d" % (8 * i), novm=True)
        p("s_nop 1")
    p("s_waitcnt vmcnt(0)", novm=True)
    p.label(label)
    print("stamps:", ST.names)

S_WAVE, S_HKV, S_B, S_S, S_G = "s24", "s25", "s26", "s27", "s28"

def ids(p):
    p("""
    v_lshrrev_b32 v1, 6, v0
    v_and_b32 v2, 63, v0
    v_readfirstlane_b32 s24, v1
    s_and_b32 s25, s2, 7
    s_lshr_b32 s26, s2, 3
    s_and_b32 s27, s26, 3
    s_lshr_b32 s26, s26, 2
    s_lshl_b32 s28, s26, 3
    s_add_u32 s28, s28, s25
    v_lshrrev_b32 v4, 5, v2
    v_and_b32 v5, 15, v2
    v_lshrrev_b32 v6, 4, v2
    v_lshlrev_b32 v13, 4, v2
    """)

def srd(p, base, lo, hi, size, add=None):
    if add is None:
        p("s_mov_b32 s%d, %s\ns_mov_b32 s%d, %s" % (base, lo, base + 1, hi))
    else:
        p("s_add_u32 s%d, %s, %s\ns_addc_u32 s%d, %s, 0" % (base, lo, add, base + 1, hi))
    p("s_mov_b32 s%d, %s\ns_mov_b32 s%d, 0x20000" % (base + 2, size, base + 3))

def qphase(p, bufs, wo_lds, after_issue=None, hooks=None, store_aux="", wop_aux="", V=None):
    hooks = hooks or {}
    nb = len(bufs)
    p("v_xor_b32 v7, v5, v6")
    for q in range(4):
        p("v_xor_b32 v8, %d, v7" % (4 * q))
        p("v_lshlrev_b32 v8, 4, v8")
        p("v_lshlrev_b32 v9, 10, v6")
        p("v_add_u32 v%d, v8, v9" % (44 + q))
    p("""
    v_lshlrev_b32 v8, 2, v6
    v_xor_b32 v8, v5, v8
    v_lshlrev_b32 v8, 4, v8
    v_lshlrev_b32 v9, 13, v6
    v_add_u32 v48, v8, v9
    v_lshlrev_b32 v9, 10, v6
    v_add_u32 v49, v8, v9
    """)
    p("s_add_u32 s33, s26, s27\ns_and_b32 s33, s33, 3")
    def chunk_issue(i):
        buf = bufs[i % nb]
        L = []
        L.append(I("s_add_u32 s34, s33, %d" % i)); L.append(I("s_and_b32 s34, s34, 3"))
        L.append(I("s_lshl_b32 s35, s34, 8"))
        L.append(I("s_lshl_b32 s36, s24, 14"))
        L.append(I("s_add_u32 s35, s35, s36"))
        L.append(I("s_lshl_b32 s36, s24, 12"))
        for q in range(4):
            L.append(I("s_add_u32 m0, s36, %d" % (buf + q * 1024)))
            L.append(I("s_add_u32 s31, s35, %d" % (q * 4096)))
            L.append(I("buffer_load_dwordx4 v%d, s[40:43], s31 offen lds" % (44 + q), vm=("C", i)))
        L.append(I("s_lshl_b32 s35, s34, 20"))
        L.append(I("s_lshl_b32 s36, s24, 18"))
        L.append(I("s_add_u32 s35, s35, s36"))
        L.append(I("s_lshl_b32 s36, s24, 13"))
        for q in range(8):
            L.append(I("s_add_u32 m0, s36, %d" % (buf + 16384 + q * 1024)))
            L.append(I("s_add_u32 s31, s35, %d" % (q * 32768)))
            L.append(I("buffer_load_dwordx4 v48, s[44:47], s31 offen lds", vm=("C", i)))
        return L
    for i in range(min(nb, 4)):
        p.extend(chunk_issue(i))
    p("s_lshl_b32 s35, s2, 14\ns_lshl_b32 s36, s24, 8\ns_add_u32 s35, s35, s36\ns_lshl_b32 s36, s24, 12")
    for q in range(4):
        p("s_add_u32 m0, s36, %d" % (wo_lds + q * 1024))
        p("s_add_u32 s31, s35, %d" % (q * 4096))
        p.add(I("buffer_load_dwordx4 v49, s[48:51], s31 offen lds", vm="WRAW"))
    if "issued" in hooks: hooks["issued"](p)
    lane_consts_k(p, 2, 4, 20, 8)
    lane_consts_tr(p, 2, 4, 32, "W", 56)
    lane_consts_tr(p, 2, 4, 28, "V", 56)
    p("v_mov_b32 v40, v32")
    for w in range(1, 4):
        p("s_cmp_eq_u32 s24, %d" % w)
        p("s_cbranch_scc0 Q_sel%d" % w)
        p("v_mov_b32 v40, v%d" % (32 + w))
        p.label("Q_sel%d" % w)
    for i in range(4):
        buf = bufs[i % nb]
        p.add(WVM(("C", i)))
        p("s_barrier")
        if "ready%d" % i in hooks: hooks["ready%d" % i](p)
        def rd(ks):
            fa = 4 * (ks % 4); fb = 16 + 8 * (ks % 4)
            offA = buf + 16384 + (16 * ks) * 256
            offB = buf
            a_addr, a_off = ("v41", offA - buf) if buf else ("v40", offA)
            return [I("ds_read_b64_tr_b16 %s, %s offset:%d" % (ar(fa, 2), a_addr, a_off), ds=("QA", i, ks)),
                    I("ds_read_b64_tr_b16 %s, %s offset:%d" % (ar(fa + 2, 2), a_addr, a_off + 1024), ds=("QA", i, ks)),
                    I("ds_read_b128 %s, v%d" % (ar(fb, 4), (50 + ks) if buf else (20 + ks)), ds=("QB", i, ks)),
                    I("ds_read_b128 %s, v%d offset:8192" % (ar(fb + 4, 4), (50 + ks) if buf else (20 + ks)), ds=("QB", i, ks))]
        if buf:
            p("v_add_u32 v41, %d, v40" % buf)
            for ks in range(8): p("v_add_u32 v%d, %d, v%d" % (50 + ks, buf, 20 + ks))
        p.extend(rd(0)); p.extend(rd(1))
        for ks in range(8):
            if ks + 2 < 8: p.extend(rd(ks + 2))
            fa = 4 * (ks % 4); fb = 16 + 8 * (ks % 4)
            for qb in range(2):
                c = "0" if (i == 0 and ks == 0) else vr(64 + 16 * qb, 16)
                p.add(I("v_mfma_f32_32x32x16_bf16 %s, %s, %s, %s" % (vr(64 + 16 * qb, 16), ar(fa, 4), ar(fb + 4 * qb, 4), c),
                        needs=[("QA", i, ks), ("QB", i, ks)]))
        if i == 1:
            p.add(WVM("WRAW"))
            p("s_lshl_b32 s36, s24, 12\ns_add_u32 s36, s36, %d" % wo_lds)
            for db in range(4):
                p("v_add_u32 v42, s36, v%d" % (28 + db))
                p.add(I("ds_read_b64_tr_b16 %s, v42" % vr(96 + 4 * db, 2), ds=("WP", db)))
                p.add(I("ds_read_b64_tr_b16 %s, v42 offset:2048" % vr(98 + 4 * db, 2), ds=("WP", db)))
            p("s_lshl_b32 s35, s24, 20\ns_lshl_b32 s36, s2, 10\ns_add_u32 s35, s35, s36\ns_add_u32 s35, s35, 0x%x" % WOP)
            for db in range(4):
                p("s_add_u32 s31, s35, %d" % (db * 256 * 1024))
                p.add(I("buffer_store_dwordx4 %s, v13, s[20:23], s31 offen %s" % (vr(96 + 4 * db, 4), wop_aux), needs=[("WP", db)], vm="WPST"))
        if i + nb < 4 or ("done%d" % i) in hooks:
            p("s_barrier")
            if i + nb < 4: p.extend(chunk_issue(i + nb))
            if "done%d" % i in hooks: hooks["done%d" % i](p)
    p("s_nop 7\ns_nop 7")
    p("s_mov_b32 s34, 0x%x" % f2u(C_SCALE))
    for i in range(32):
        p("v_mul_f32 v%d, s34, v%d" % (64 + i, 64 + i))
    p("""
    s_lshl_b32 s35, s26, 5
    s_lshl_b32 s36, s25, 2
    s_add_u32 s35, s35, s36
    s_add_u32 s35, s35, s27
    s_lshl_b32 s35, s35, 14
    s_lshl_b32 s36, s24, 12
    s_add_u32 s35, s35, s36
    """)
    for qb in range(2):
        for t in range(2):
            base = 64 + 16 * qb + 8 * t
            d = 96 + 4 * (qb * 2 + t)
            for e in range(4):
                p("v_cvt_pk_bf16_f32 v%d, v%d, v%d" % (d + e, base + 2 * e, base + 2 * e + 1))

def gen_k0(stamps=False, bufs=(0, 49152, 98304)):
    p = Prog()
    ST.regs = []; ST.names = []; ST.on = stamps
    p("""
    s_cmp_ge_u32 s2, 256
    s_cbranch_scc1 K0_end
    s_load_dwordx2 s[4:5], s[0:1], 0
    s_load_dwordx4 s[8:11], s[0:1], 24
    s_load_dwordx2 s[64:65], s[0:1], 56
    """)
    st(p, "start")
    ids(p)
    p("s_waitcnt lgkmcnt(0)")
    p("s_lshl_b32 s33, s26, 16")
    srd(p, 40, "s4", "s5", "65536", "s33")
    p("s_lshl_b32 s33, s25, 2\ns_add_u32 s33, s33, s27\ns_lshl_b32 s33, s33, 8")
    p("s_add_u32 s44, s8, s33\ns_addc_u32 s45, s9, 0\ns_sub_u32 s46, 4194304, s33\ns_mov_b32 s47, 0x20000")
    srd(p, 48, "s10", "s11", "4194304")
    srd(p, 20, "s64", "s65", "0x%x" % WS_BYTES)
    hooks = {"issued": lambda p: st(p, "issued")}
    for i in range(4): hooks["ready%d" % i] = (lambda i: (lambda p: st(p, "rdy%d" % i)))(i)
    qphase(p, bufs, 147456, hooks=hooks)
    for qb in range(2):
        for t in range(2):
            p("buffer_store_dwordx4 %s, v13, s[20:23], s35 offen offset:%d" % (vr(96 + 4 * (qb * 2 + t), 4), (t * 2 + qb) * 1024))
    st(p, "qdone")
    p("s_waitcnt vmcnt(0)")
    st(p, "end")
    st_finish(p, 64, "s24", "K0_nost")
    p.label("K0_end")
    p("s_endpgm")
    ins = insert_vm(insert_lgkm(p.ins))
    check_hazards(ins, "k0")
    return kernel_block("k0_kernel", render(ins), 256, 102, 128)


NT = 16
NS = 10
SLOT0 = 3
S_BUF = [64, 96]; P_BUF = [128, 144]; NEGM = 160
O_A = 0; Q_A = 128; KF_A = 192; VF_A = 224
TMP = 40; TS = [48, 50]; L_V = 52
KADDR = [16, 24, 192]; VADDR = [32, 36, 200]
def slot_of(t): return (t + SLOT0) % NS

def poll(p, label, addr_v, s_base, maxit=300000, sleep=0):
    p("s_mov_b32 s44, 0")
    p.label(label)
    p("global_load_dwordx2 v[8:9], %s, %s sc1" % (addr_v, s_base), novm=True)
    p("s_waitcnt vmcnt(0)", novm=True)
    p("v_cmp_eq_u32 vcc, s38, v8")
    p("v_cmp_eq_u32 s[46:47], s39, v9")
    p("s_add_u32 s44, s44, 1")
    p("s_nop 2")
    p("s_and_b64 vcc, vcc, s[46:47]")
    p("s_cmp_eq_u64 vcc, -1")
    p("s_cbranch_scc1 %s_ok" % label)
    p("s_cmp_lt_u32 s44, %d" % maxit)
    p("s_cbranch_scc1 %s" % label)
    p.label(label + "_ok")

def flag_store(p, s_base, off_sreg, aux="sc1"):
    p("v_mov_b32 v7, %s\nv_mov_b32 v8, s38\nv_mov_b32 v9, s39" % off_sreg)
    p("s_mov_b64 exec, 1")
    p("global_store_dwordx2 v7, v[8:9], %s %s" % (s_base, aux), novm=True)
    p("s_mov_b64 exec, -1")

def gen_fused(D=8, LA=3, aux="nt", stamps=False, thr=4096.0, sel=None, fast=False, touch_code=True, kv_pre=(2, 2)):
    p = Prog()
    ST.regs = []; ST.names = []; ST.on = stamps; ST.sel = sel
    p.label("F_begin")
    p("""
    s_cmp_ge_u32 s2, 256
    s_cbranch_scc1 F_end
    s_load_dwordx4 s[4:7], s[0:1], 0
    s_load_dwordx4 s[8:11], s[0:1], 16
    s_load_dwordx4 s[56:59], s[0:1], 32
    s_load_dwordx2 s[60:61], s[0:1], 48
    s_load_dwordx2 s[64:65], s[0:1], 56
    """)
    st(p, "start")
    ids(p)
    p("s_getreg_b32 s37, hwreg(HW_REG_XCC_ID)\ns_and_b32 s37, s37, 15")
    p("s_lshl_b32 s29, s27, 17\ns_lshl_b32 s30, s24, 11\ns_add_u32 s29, s29, s30")
    p("s_mov_b32 s32, 0x%x" % f2u(thr))
    p("s_waitcnt lgkmcnt(0)")
    p("s_lshl_b32 s33, s26, 16")
    srd(p, 40, "s4", "s5", "65536", "s33")
    p("s_lshl_b32 s33, s25, 2\ns_add_u32 s33, s33, s27\ns_lshl_b32 s33, s33, 8")
    p("s_add_u32 s44, s10, s33\ns_addc_u32 s45, s11, 0\ns_sub_u32 s46, 4194304, s33\ns_mov_b32 s47, 0x20000")
    srd(p, 48, "s56", "s57", "4194304")
    srd(p, 20, "s64", "s65", "0x%x" % WS_BYTES)
    p("s_lshl_b32 s33, s28, 19")
    srd(p, 12, "s6", "s7", "524288", "s33")
    srd(p, 16, "s8", "s9", "524288", "s33")
    p("v_xor_b32 v7, v5, v6")
    for q in range(4):
        p("v_xor_b32 v8, %d, v7\nv_lshlrev_b32 v8, 4, v8\nv_lshlrev_b32 v9, 10, v6\nv_add_u32 v%d, v8, v9" % (4 * q, 44 + q))
    p("""
    v_lshlrev_b32 v8, 2, v6
    v_xor_b32 v8, v5, v8
    v_lshlrev_b32 v8, 4, v8
    v_lshlrev_b32 v9, 13, v6
    v_add_u32 v48, v8, v9
    v_lshlrev_b32 v9, 10, v6
    v_add_u32 v49, v8, v9
    v_lshlrev_b32 v9, 8, v6
    v_add_u32 v12, v8, v9
    s_and_b32 s34, s24, 1
    s_lshl_b32 s34, s34, 3
    v_xor_b32 v8, s34, v7
    v_lshlrev_b32 v10, 4, v8
    v_add_u32 v10, v10, v9
    v_xor_b32 v8, 4, v8
    v_lshlrev_b32 v11, 4, v8
    v_add_u32 v11, v11, v9
    s_add_u32 s33, s26, s27
    s_and_b32 s33, s33, 3
    """)
    BUF = [0, 49152, 98304, 0]
    WO_LDS = 147456
    def chunk_issue(i):
        buf = BUF[i]
        G = []
        pre = [I("s_add_u32 s34, s33, %d" % i), I("s_and_b32 s34, s34, 3"), I("s_lshl_b32 s35, s34, 8"), I("s_lshl_b32 s36, s24, 14"),
               I("s_add_u32 s35, s35, s36"), I("s_lshl_b32 s36, s24, 12")]
        for q in range(4):
            G.append((pre if q == 0 else []) + [I("s_add_u32 m0, s36, %d" % (buf + q * 1024)), I("s_add_u32 s31, s35, %d" % (q * 4096)),
                      I("buffer_load_dwordx4 v%d, s[40:43], s31 offen lds" % (44 + q), vm=("C", i))])
        pre = [I("s_lshl_b32 s35, s34, 20"), I("s_lshl_b32 s36, s24, 18"), I("s_add_u32 s35, s35, s36"), I("s_lshl_b32 s36, s24, 13")]
        for q in range(8):
            G.append((pre if q == 0 else []) + [I("s_add_u32 m0, s36, %d" % (buf + 16384 + q * 1024)), I("s_add_u32 s31, s35, %d" % (q * 32768)),
                      I("buffer_load_dwordx4 v48, s[44:47], s31 offen lds", vm=("C", i))])
        return G
    def flat(G): return [x for g in G for x in g]
    def dma(tile):
        sl = slot_of(tile)
        return [
            [I("s_add_u32 m0, s30, %d" % (sl * 16384)), I("s_add_u32 s31, s29, %d" % (tile * 8192)),
             I("buffer_load_dwordx4 v10, s[12:15], s31 offen %s lds" % aux, vm=("T", tile))],
            [I("buffer_load_dwordx4 v11, s[12:15], s31 offen offset:1024 %s lds" % aux, vm=("T", tile))],
            [I("s_add_u32 m0, s30, %d" % (sl * 16384 + 8192)), I("s_nop 0"),
             I("buffer_load_dwordx4 v12, s[16:19], s31 offen %s lds" % aux, vm=("T", tile))],
            [I("buffer_load_dwordx4 v12, s[16:19], s31 offen offset:1024 %s lds" % aux, vm=("T", tile))],
        ]
    p.extend(flat(chunk_issue(0)))
    p.extend(flat(chunk_issue(1)))
    p("s_lshl_b32 s35, s2, 14\ns_lshl_b32 s36, s24, 8\ns_add_u32 s35, s35, s36\ns_lshl_b32 s36, s24, 12")
    for q in range(4):
        p("s_add_u32 m0, s36, %d" % (WO_LDS + q * 1024))
        p("s_add_u32 s31, s35, %d" % (q * 4096))
        p.add(I("buffer_load_dwordx4 v49, s[48:51], s31 offen lds", vm="WRAW"))
    if touch_code:
        p("s_getpc_b64 s[66:67]")
        p.label("F_pc")
        p("s_sub_u32 s66, s66, F_pc-F_begin\ns_subb_u32 s67, s67, 0")
        p("s_lshr_b32 s35, s2, 3\ns_lshl_b32 s35, s35, 10")
        p("v_and_b32 v8, 7, v2\nv_lshlrev_b32 v8, 7, v8\nv_add_u32 v8, s35, v8")
        p("global_load_dword v63, v8, s[66:67]", vm="CODE")
    p("s_or_b32 s35, s2, s24\ns_cmp_eq_u32 s35, 0\ns_cbranch_scc0 F_nonce_pub")
    p("s_memrealtime s[38:39]\ns_waitcnt lgkmcnt(0)\ns_or_b32 s38, s38, 1")
    p("v_mov_b32 v8, s38\nv_mov_b32 v9, s39\nv_mov_b32 v7, 0\ns_mov_b64 exec, 1")
    p("global_store_dwordx2 v7, v[8:9], s[60:61] sc1", novm=True)
    p("s_mov_b64 exec, -1")
    p.label("F_nonce_pub")
    st(p, "issued")
    lane_consts_k(p, 2, 4, 20, 8)
    lane_consts_tr(p, 2, 4, 32, "W", 56)
    lane_consts_tr(p, 2, 4, 28, "V", 56)
    p("v_mov_b32 v40, v32")
    for w in range(1, 4):
        p("s_cmp_eq_u32 s24, %d\ns_cbranch_scc0 Q_sel%d\nv_mov_b32 v40, v%d" % (w, w, 32 + w))
        p.label("Q_sel%d" % w)
    for i in range(4):
        buf = BUF[i]
        if buf:
            p("v_add_u32 v41, %d, v40" % buf)
            for ks in range(8): p("v_add_u32 v%d, %d, v%d" % (50 + ks, buf, 20 + ks))
        p.add(WVM(("C", i)))
        p("s_barrier")
        st(p, "rdy%d" % i)
        def rd(ks):
            fa = 4 * (ks % 4); fb = 16 + 8 * (ks % 4)
            a_addr = "v41" if buf else "v40"
            a_off = 16384 + (16 * ks) * 256
            b = (50 + ks) if buf else (20 + ks)
            return [I("ds_read_b64_tr_b16 %s, %s offset:%d" % (ar(fa, 2), a_addr, a_off), ds=("QA", i, ks)),
                    I("ds_read_b64_tr_b16 %s, %s offset:%d" % (ar(fa + 2, 2), a_addr, a_off + 1024), ds=("QA", i, ks)),
                    I("ds_read_b128 %s, v%d" % (ar(fb, 4), b), ds=("QB", i, ks)),
                    I("ds_read_b128 %s, v%d offset:8192" % (ar(fb + 4, 4), b), ds=("QB", i, ks))]
        bg = []
        if i == 0: bg = chunk_issue(2)
        if i == 1: bg = chunk_issue(3)
        if i == 2: bg = [g for t in range(kv_pre[0]) for g in dma(t)]
        p.extend(rd(0)); p.extend(rd(1)); p.extend(rd(2))
        for ks in range(8):
            fa = 4 * (ks % 4); fb = 16 + 8 * (ks % 4)
            for qb in range(2):
                c = "0" if (i == 0 and ks == 0) else vr(64 + 16 * qb, 16)
                p.add(I("v_mfma_f32_32x32x16_bf16 %s, %s, %s, %s" % (vr(64 + 16 * qb, 16), ar(fa, 4), ar(fb + 4 * qb, 4), c),
                        needs=[("QA", i, ks), ("QB", i, ks)]))
                if qb == 0 and ks + 3 < 8: p.extend(rd(ks + 3))
                if qb == 1 and bg:
                    p.extend(bg.pop(0))
                    if len(bg) > 2 * (7 - ks) and bg: p.extend(bg.pop(0))
        while bg: p.extend(bg.pop(0))
        if i == 2:
            p.add(WVM("WRAW"))
            p("s_lshl_b32 s36, s24, 12\ns_add_u32 s36, s36, %d" % WO_LDS)
            for db in range(4):
                p("v_add_u32 v42, s36, v%d" % (28 + db))
                p.add(I("ds_read_b64_tr_b16 %s, v42" % vr(96 + 4 * db, 2), ds=("WP", db)))
                p.add(I("ds_read_b64_tr_b16 %s, v42 offset:2048" % vr(98 + 4 * db, 2), ds=("WP", db)))
            p("s_lshl_b32 s35, s24, 20\ns_lshl_b32 s36, s2, 10\ns_add_u32 s35, s35, s36\ns_add_u32 s35, s35, 0x%x" % WOP)
            for db in range(4):
                p("s_add_u32 s31, s35, %d" % (db * 256 * 1024))
                p.add(I("buffer_store_dwordx4 %s, v13, s[20:23], s31 offen sc1" % vr(96 + 4 * db, 4), needs=[("WP", db)], vm="WPST"))
    p("s_nop 7\ns_nop 7")
    p("s_mov_b32 s34, 0x%x" % f2u(C_SCALE))
    for i in range(32):
        p("v_mul_f32 v%d, s34, v%d" % (64 + i, 64 + i))
    p("""
    s_lshl_b32 s35, s26, 5
    s_lshl_b32 s36, s25, 2
    s_add_u32 s35, s35, s36
    s_add_u32 s35, s35, s27
    s_lshl_b32 s35, s35, 14
    s_lshl_b32 s36, s24, 12
    s_add_u32 s35, s35, s36
    """)
    for qb in range(2):
        for t in range(2):
            base = 64 + 16 * qb + 8 * t
            d = 112 + 4 * (qb * 2 + t)
            for e in range(4):
                p("v_cvt_pk_bf16_f32 v%d, v%d, v%d" % (d + e, base + 2 * e, base + 2 * e + 1))
            p.add(I("buffer_store_dwordx4 %s, v13, s[20:23], s35 offen offset:%d sc1" % (vr(d, 4), (t * 2 + qb) * 1024), vm="QST"))
    st(p, "qst")
    n_pre = kv_pre[0]
    t2 = list(range(n_pre, n_pre + kv_pre[1]))
    p("s_cmp_eq_u32 s24, 0\ns_cbranch_scc1 F_x0_w0")
    for t in t2: p.extend(flat(dma(t)))
    p.add(WVM("QST"))
    p("s_barrier")
    p("s_branch F_x0_join")
    p.label("F_x0_w0")
    p("s_waitcnt vmcnt(0)", novm=True)
    p("v_mov_b32 v7, 0\ns_mov_b32 s44, 0")
    p.label("F_rdnonce")
    p("global_load_dwordx2 v[8:9], v7, s[60:61] sc1", novm=True)
    p("s_waitcnt vmcnt(0)", novm=True)
    p("v_readfirstlane_b32 s38, v8\nv_readfirstlane_b32 s39, v9\ns_add_u32 s44, s44, 1\ns_cmp_lg_u32 s38, 0\ns_cbranch_scc1 F_nonce_ok")
    p("s_cmp_lt_u32 s44, 300000\ns_cbranch_scc1 F_rdnonce")
    p.label("F_nonce_ok")
    p("s_barrier")
    p("s_add_u32 s48, s64, 0x%x\ns_addc_u32 s49, s65, 0\ns_lshl_b32 s45, s28, 9\ns_add_u32 s48, s48, s45\ns_addc_u32 s49, s49, 0" % F_X0)
    p("s_lshl_b32 s45, s27, 7")
    flag_store(p, "s[48:49]", "s45")
    p("v_and_b32 v7, 3, v2\nv_lshlrev_b32 v7, 7, v7")
    poll(p, "F_x0_poll", "v7", "s[48:49]")
    for t in t2:
        for x in flat(dma(t)):
            x.novm = True; p.add(x)
    p.label("F_x0_join")
    p("s_barrier")
    st(p, "x0")
    p("""
    s_lshl_b32 s35, s26, 5
    s_lshl_b32 s36, s25, 2
    s_add_u32 s35, s35, s36
    s_add_u32 s35, s35, s24
    s_lshl_b32 s35, s35, 14
    """)
    for f in range(16):
        if f % 4 == 0 and f: p("s_add_u32 s35, s35, 4096")
        p.add(I("buffer_load_dwordx4 %s, v13, s[20:23], s35 offen offset:%d sc1" % (ar(Q_A + 4 * f, 4), (f % 4) * 1024), vm="QLD"))
    for t in range(n_pre + kv_pre[1], D):
        p.extend(flat(dma(t)))
    lane_consts_k(p, 2, 4, KADDR[0], 8)
    lane_consts_tr(p, 2, 4, VADDR[0], "V", 56)
    for k in (1, 2):
        for s_ in range(8): p("v_add_u32 v%d, 0x%x, v%d" % (KADDR[k] + s_, 0x10000 * k, KADDR[0] + s_))
        for d in range(4): p("v_add_u32 v%d, 0x%x, v%d" % (VADDR[k] + d, 0x10000 * k, VADDR[0] + d))
    p("v_mov_b32 v%d, 0\nv_mov_b32 v%d, 0" % (L_V, L_V + 1))
    attention(p, D, LA, dma, flat)
    tail(p, fast)
    st(p, "end")
    st_finish(p, 64, "s24", "F_nost")
    p("s_branch F_end")
    rare_paths(p)
    p.label("F_end")
    p("s_endpgm")
    ins = insert_vm(insert_lgkm(p.ins))
    check_hazards(ins, "fused")
    return kernel_block(NAME + "_kernel", render(ins), 512, 102, 256)

def kread(tile, s):
    off = slot_of(tile) * 16384
    k = off >> 16
    return I("ds_read_b128 %s, v%d offset:%d" % (ar(KF_A + 4 * s, 4), KADDR[k] + s, off - 65536 * k), ds=("K", tile, s))
def vread(tile, kk):
    db, t = kk & 3, kk >> 2
    off = slot_of(tile) * 16384 + 8192 + t * 4096
    k = off >> 16
    off -= 65536 * k
    f = VF_A + 4 * kk
    return [I("ds_read_b64_tr_b16 %s, v%d offset:%d" % (ar(f, 2), VADDR[k] + db, off), ds=("V", tile, kk)),
            I("ds_read_b64_tr_b16 %s, v%d offset:%d" % (ar(f + 2, 2), VADDR[k] + db, off + 2048), ds=("V", tile, kk))]
def qk_mfma(tile, s, qb, cinit):
    S = S_BUF[tile & 1] + 16 * qb
    c = cinit if s == 0 else vr(S, 16)
    return I("v_mfma_f32_32x32x16_bf16 %s, %s, %s, %s" % (vr(S, 16), ar(KF_A + 4 * s, 4), ar(Q_A + (s * 2 + qb) * 4, 4), c), needs=[("K", tile, s)])
def pv_mfma(tile, kk, qb):
    db, t = kk & 3, kk >> 2
    o = O_A + (db * 2 + qb) * 16
    c = "0" if (tile == 0 and t == 0) else ar(o, 16)
    return I("v_mfma_f32_32x32x16_bf16 %s, %s, %s, %s" % (ar(o, 16), ar(VF_A + 4 * kk, 4), vr(P_BUF[tile & 1] + (qb * 2 + t) * 4, 4), c), needs=[("V", tile, kk)])

def attention(p, D, LA, dma, flat, extra=None):
    extra = extra or {}
    p.add(WVM("QLD", ("T", 0)))
    p("s_barrier")
    st(p, "bar0")
    for s in range(8): p.add(kread(0, s))
    for s in range(8):
        for qb in range(2):
            p.add(qk_mfma(0, s, qb, "0"))
    p("s_nop 15")
    for qb in range(2):
        S = S_BUF[0] + 16 * qb
        p("v_max3_f32 v54, v%d, v%d, v%d" % (S, S + 1, S + 2))
        for i in range(3, 15, 2):
            p("v_max3_f32 v54, v54, v%d, v%d" % (S + i, S + i + 1))
        p("v_max_f32 v54, v54, v%d" % (S + 15))
        p("v_mov_b32 v55, v54\ns_nop 1\nv_permlane32_swap_b32 v54, v55\ns_nop 1\nv_max_f32 v54, v54, v55\nv_sub_f32 v54, 0, v54")
        for i in range(16): p("v_mov_b32 v%d, v54" % (NEGM + 16 * qb + i))
        for i in range(16): p("v_add_f32 v%d, v%d, v54" % (S + i, S + i))
    ORDER = [("P", 0), ("P", 1), ("Q", 0), ("P", 2), ("Q", 1), ("P", 3), ("Q", 2), ("P", 4), ("Q", 3), ("P", 5), ("Q", 4), ("P", 6), ("Q", 5), ("Q", 6), ("Q", 7), ("P", 7)]
    pairs = []; first_pos = {}
    for it in range(NT + 1):
        first_pos[it] = len(pairs)
        for kind, k in ORDER:
            if kind == "P" and it - 1 < 0: continue
            if kind == "Q" and it + 1 > NT - 1: continue
            pairs.append((it, kind, k))
    N = len(pairs)
    reads_at = {x: [] for x in range(-1, N)}
    for x, (it, kind, k) in enumerate(pairs):
        pos = x - LA
        if kind == "Q" and pos < first_pos[it]: pos = ("start", it)
        rd = [kread(it + 1, k)] if kind == "Q" else vread(it - 1, k)
        reads_at.setdefault(pos, []).extend(rd)
    def softmax_queue(tile):
        S = S_BUF[tile & 1]; P = P_BUF[tile & 1]; ts = TS[tile & 1]
        q = []
        E = lambda e: I("v_exp_f32 v%d, v%d" % (TMP + e % 8, S + e))
        def A(e):
            qb, r = e >> 4, e & 15
            if r == 0: return None
            if r == 1: return I("v_add_f32 v%d, v%d, v%d" % (ts + qb, TMP + (e - 1) % 8, TMP + e % 8))
            return I("v_add_f32 v%d, v%d, v%d" % (ts + qb, ts + qb, TMP + e % 8))
        def C(e):
            if e % 2 == 0: return None
            qb, r = e >> 4, e & 15
            return I("v_cvt_pk_bf16_f32 v%d, v%d, v%d" % (P + (qb * 2 + (r >> 3)) * 4 + ((r & 7) >> 1), TMP + (e - 1) % 8, TMP + e % 8))
        for e in range(32):
            q.append(E(e))
            if e >= 1: q += [x for x in (A(e - 1), C(e - 1)) if x]
        q.append(I("s_nop 0"))
        q += [x for x in (A(31), C(31)) if x]
        q.append(I("v_max_f32 v54, v%d, v%d" % (ts, ts + 1)))
        q.append(I("v_cmp_lt_f32 vcc, s32, v54"))
        return q
    x = 0
    for it in range(NT + 1):
        its = [pp for pp in pairs if pp[0] == it]
        if it >= 1:
            p("s_cbranch_vccnz F_stub%d" % (it - 1))
            p.label("F_back%d" % (it - 1))
        if it + 1 <= NT - 1:
            p.add(WVM(("T", it + 1)))
            p("s_barrier")
        p.extend(reads_at.get(("start", it), []))
        vq = []
        if it >= 1:
            ts = TS[(it - 1) & 1]
            vq += [I("v_add_f32 v%d, v%d, v%d" % (L_V + qb, L_V + qb, ts + qb)) for qb in range(2)]
        if it <= NT - 1: vq += softmax_queue(it)
        dq = dma(it + D) if it + D <= NT - 1 else []
        dq = dq + extra.get(it, [])
        npair = len(its)
        for j, (_, kind, k) in enumerate(its):
            ms = [qk_mfma(it + 1, k, qb, vr(NEGM + 16 * qb, 16)) for qb in range(2)] if kind == "Q" else [pv_mfma(it - 1, k, qb) for qb in range(2)]
            rds = list(reads_at[x])
            fixed = [rds[:2], rds[2:]]
            if dq and j >= 1 and j % 2 == 1: fixed[1] = fixed[1] + dq.pop(0)
            for gi in range(2):
                p.add(ms[gi])
                budget = 24 - sum(y.cost for y in fixed[gi]) - (4 if gi == 1 else 0)
                p.extend(fixed[gi])
                remaining_gaps = (npair - j) * 2 - gi
                while vq and (budget >= vq[0].cost or remaining_gaps == 1):
                    y = vq.pop(0); p.add(y); budget -= y.cost
            x += 1
        while dq: p.extend(dq.pop(0))
        while vq: p.add(vq.pop(0))
    st(p, "loopend")

def rare_paths(p):
    for it in range(NT):
        p.label("F_stub%d" % it)
        p("s_call_b64 s[62:63], F_rare%d" % (it & 1))
        p("s_branch F_back%d" % it)
    for par in range(2):
        S = S_BUF[par]; Sn = S_BUF[par ^ 1]; P = P_BUF[par]; ts = TS[par]
        p.label("F_rare%d" % par)
        p("s_nop 15\ns_nop 15")
        for qb in range(2):
            Sq = S + 16 * qb
            p("v_max3_f32 v54, v%d, v%d, v%d" % (Sq, Sq + 1, Sq + 2))
            for i in range(3, 15, 2): p("v_max3_f32 v54, v54, v%d, v%d" % (Sq + i, Sq + i + 1))
            p("v_max_f32 v54, v54, v%d" % (Sq + 15))
            p("v_mov_b32 v55, v54\ns_nop 1\nv_permlane32_swap_b32 v54, v55\ns_nop 1\nv_max3_f32 v54, v54, v55, 0")
            p("v_sub_f32 v55, 0, v54\nv_exp_f32 v55, v55")
            for i in range(16):
                p("v_sub_f32 v%d, v%d, v54" % (NEGM + 16 * qb + i, NEGM + 16 * qb + i))
                p("v_sub_f32 v%d, v%d, v54" % (Sq + i, Sq + i))
                p("v_sub_f32 v%d, v%d, v54" % (Sn + 16 * qb + i, Sn + 16 * qb + i))
            p("v_mul_f32 v%d, v%d, v55" % (L_V + qb, L_V + qb))
            for db in range(4):
                for r in range(16):
                    a = O_A + (db * 2 + qb) * 16 + r
                    p("v_accvgpr_read_b32 v56, a%d\nv_mul_f32 v56, v56, v55\nv_accvgpr_write_b32 a%d, v56" % (a, a))
            for i in range(16): p("v_exp_f32 v%d, v%d" % (216 + i, Sq + i))
            p("s_nop 0")
            p("v_add_f32 v%d, v216, v217" % (ts + qb))
            for i in range(2, 16): p("v_add_f32 v%d, v%d, v%d" % (ts + qb, ts + qb, 216 + i))
            for e in range(8):
                r = 2 * e
                p("v_cvt_pk_bf16_f32 v%d, v%d, v%d" % (P + (qb * 2 + (r >> 3)) * 4 + ((r & 7) >> 1), 216 + r, 217 + r))
        p("s_nop 7")
        p("s_setpc_b64 s[62:63]")

def tail(p, fast):
    p("v_mov_b32 v7, 0")
    p("global_load_dwordx2 v[8:9], v7, s[60:61] sc1", vm="NONCE")
    p("s_nop 7")
    for qb in range(2):
        l = L_V + qb
        p("v_mov_b32 v55, v%d\ns_nop 1\nv_permlane32_swap_b32 v%d, v55\ns_nop 1" % (l, l))
        p("v_add_f32 v%d, v%d, v55" % (57 + 2 * qb, l))
        p("v_sub_f32 v%d, 0, v%d" % (56 + 2 * qb, NEGM + 16 * qb))
    p("s_lshl_b32 s35, s28, 2\ns_add_u32 s35, s35, s24\ns_lshl_b32 s35, s35, 2\ns_add_u32 s35, s35, s27")
    p("s_mul_i32 s35, s35, 0x%x\ns_add_u32 s35, s35, 0x%x\nv_lshlrev_b32 v14, 3, v2" % (PBLK, PART))
    n = 0
    for db in range(4):
        for qb in range(2):
            for t in range(2):
                a0 = O_A + (db * 2 + qb) * 16 + 8 * t
                tv = 64 + (n % 4) * 8
                for e in range(8): p("v_accvgpr_read_b32 v%d, a%d" % (tv + e, a0 + e))
                for e in range(4): p("v_cvt_pk_bf16_f32 v%d, v%d, v%d" % (192 + 4 * n + e, tv + 2 * e, tv + 2 * e + 1))
                n += 1
    st(p, "cvt")
    p("s_add_u32 s36, s35, 16384")
    p.add(I("buffer_store_dwordx2 v[56:57], v14, s[20:23], s36 offen sc1", vm="PST"))
    p.add(I("buffer_store_dwordx2 v[58:59], v14, s[20:23], s36 offen offset:512 sc1", vm="PST"))
    for blk in range(16):
        if blk % 4 == 0 and blk: p("s_add_u32 s35, s35, 4096")
        p.add(I("buffer_store_dwordx4 %s, v13, s[20:23], s35 offen offset:%d sc1" % (vr(192 + 4 * blk, 4), (blk % 4) * 1024), vm="PST"))
    p.add(WVM("PST", "NONCE"))
    p("v_readfirstlane_b32 s38, v8\nv_readfirstlane_b32 s39, v9")
    p("s_barrier")
    st(p, "x1ack")
    p("s_add_u32 s48, s64, 0x%x\ns_addc_u32 s49, s65, 0\ns_lshl_b32 s45, s28, 9\ns_add_u32 s48, s48, s45\ns_addc_u32 s49, s49, 0" % F_X1)
    p("s_cmp_eq_u32 s24, 0\ns_cbranch_scc0 F_x1_wait\ns_lshl_b32 s45, s27, 7")
    flag_store(p, "s[48:49]", "s45")
    p("v_and_b32 v7, 3, v2\nv_lshlrev_b32 v7, 7, v7")
    poll(p, "F_x1_poll", "v7", "s[48:49]")
    p.label("F_x1_wait")
    p("s_barrier")
    st(p, "x1poll")
    p("s_lshl_b32 s35, s28, 2\ns_add_u32 s35, s35, s27\ns_lshl_b32 s35, s35, 2")
    p("s_mul_i32 s35, s35, 0x%x\ns_add_u32 s35, s35, 0x%x" % (PBLK, PART))
    p("s_lshl_b32 s45, s24, 12\ns_add_u32 s36, s35, s45")
    for s in range(4):
        p("s_add_u32 s40, s35, %d" % (s * PBLK + 16384))
        for qb in range(2):
            p.add(I("buffer_load_dwordx2 %s, v14, s[20:23], s40 offen offset:%d sc1" % (vr(16 + (s * 2 + qb) * 2, 2), qb * 512), vm="SLD"))
    for s in range(4):
        p("s_add_u32 s40, s36, %d" % (s * PBLK))
        for f in range(4):
            p.add(I("buffer_load_dwordx4 %s, v13, s[20:23], s40 offen offset:%d sc1" % (vr(64 + (s * 4 + f) * 4, 4), f * 1024), vm="PLD"))
    p("s_and_b32 s45, s2, 7\ns_lshr_b32 s46, s2, 3\ns_lshr_b32 s50, s45, 1\ns_lshl_b32 s50, s50, 2\ns_and_b32 s47, s46, 3\ns_add_u32 s50, s50, s47")
    p("s_and_b32 s51, s45, 1\ns_lshl_b32 s51, s51, 3\ns_lshr_b32 s47, s46, 2\ns_add_u32 s51, s51, s47")
    p("s_lshl_b32 s52, s51, 18\ns_lshl_b32 s53, s24, 16\ns_add_u32 s52, s52, s53\ns_add_u32 s52, s52, 0x%x" % WOP)
    p("s_lshl_b32 s54, s50, 18\ns_add_u32 s54, s54, s53\ns_add_u32 s54, s54, 0x%x" % OF)
    p("s_and_b32 s55, s51, 7\ns_lshl_b32 s55, s55, 1")
    def rot_off(dst, base, gI):
        p("s_add_u32 %s, s55, %d\ns_and_b32 %s, %s, 15\ns_lshl_b32 %s, %s, 12\ns_add_u32 %s, %s, %s" % (dst, gI, dst, dst, dst, dst, dst, dst, base))
    def aload(gI):
        rot_off("s33", "s52", gI)
        for q in range(4):
            p.add(I("buffer_load_dwordx4 %s, v13, s[20:23], s33 offen offset:%d sc1" % (ar((gI * 4 + q) * 4, 4), q * 1024), vm=("A", gI)))
    p.add(WVM("SLD"))
    for qb in range(2):
        m = lambda s: 16 + (s * 2 + qb) * 2
        p("v_max3_f32 v32, v%d, v%d, v%d\nv_max_f32 v32, v32, v%d" % (m(0), m(1), m(2), m(3)))
        for s in range(4): p("v_sub_f32 v%d, v%d, v32" % (40 + s * 2 + qb, m(s)))
        for s in range(4): p("v_exp_f32 v%d, v%d" % (40 + s * 2 + qb, 40 + s * 2 + qb))
        p("s_nop 0\nv_mul_f32 v33, v%d, v%d" % (40 + qb, m(0) + 1))
        for s in range(1, 4): p("v_fmac_f32 v33, v%d, v%d" % (40 + s * 2 + qb, m(s) + 1))
        p("v_rcp_f32 v33, v33\ns_nop 0")
        for s in range(4): p("v_mul_f32 v%d, v%d, v33" % (40 + s * 2 + qb, 40 + s * 2 + qb))
    p.add(WVM("PLD"))
    for f in range(4):
        qb = f >> 1
        for d in range(4):
            lo, hi = 128 + 2 * d, 129 + 2 * d
            for s in range(4):
                src = 64 + (s * 4 + f) * 4 + d
                p("v_lshlrev_b32 v36, 16, v%d\nv_and_b32 v37, 0xffff0000, v%d" % (src, src))
                if s == 0: p("v_mul_f32 v%d, v36, v%d\nv_mul_f32 v%d, v37, v%d" % (lo, 40 + qb, hi, 40 + qb))
                else: p("v_fmac_f32 v%d, v36, v%d\nv_fmac_f32 v%d, v37, v%d" % (lo, 40 + s * 2 + qb, hi, 40 + s * 2 + qb))
            p("v_cvt_pk_bf16_f32 v%d, v%d, v%d" % (160 + f * 4 + d, lo, hi))
    st(p, "comb")
    p("s_lshl_b32 s40, s26, 6\ns_lshl_b32 s41, s25, 2\ns_add_u32 s40, s40, s41\ns_add_u32 s40, s40, s27\ns_lshl_b32 s40, s40, 13")
    p("s_lshl_b32 s41, s24, 11\ns_add_u32 s40, s40, s41\ns_add_u32 s40, s40, 0x%x\ns_add_u32 s41, s40, 0x40000" % OF)
    for qb in range(2):
        for t in range(2):
            p.add(I("buffer_store_dwordx4 %s, v13, s[20:23], %s offen offset:%d sc1" % (vr(160 + (qb * 2 + t) * 4, 4), "s40" if qb == 0 else "s41", t * 1024), vm="OST"))
    p("s_cmp_eq_u32 s24, 0\ns_cbranch_scc0 F_wop_ok2")
    p("s_add_u32 s48, s64, 0x%x\ns_addc_u32 s49, s65, 0" % F_X0)
    for q in range(4):
        p("v_lshlrev_b32 v7, 7, v2\nv_add_u32 v7, %d, v7" % (q * 8192))
        poll(p, "F_wop_poll%d" % q, "v7", "s[48:49]")
    p.label("F_wop_ok2")
    p.add(WVM("OST"))
    p("s_barrier")
    st(p, "x2ack")
    p("s_add_u32 s48, s64, 0x%x\ns_addc_u32 s49, s65, 0" % F_X2)
    p("s_cmp_eq_u32 s24, 0\ns_cbranch_scc1 F_x2_w0")
    for gI in range(12): aload(gI)
    p("s_branch F_x2_wait")
    p.label("F_x2_w0")
    p("s_lshl_b32 s45, s26, 5\ns_lshl_b32 s46, s25, 2\ns_add_u32 s45, s45, s46\ns_add_u32 s45, s45, s27\ns_lshl_b32 s45, s45, 7")
    flag_store(p, "s[48:49]", "s45")
    p("s_lshr_b32 s45, s50, 1\ns_lshl_b32 s45, s45, 12\nv_and_b32 v7, 31, v2\nv_lshlrev_b32 v7, 7, v7\nv_add_u32 v7, s45, v7")
    poll(p, "F_x2_poll", "v7", "s[48:49]")
    k0 = len(p.ins)
    for gI in range(12): aload(gI)
    for y in p.ins[k0:]: y.novm = True
    p.label("F_x2_wait")
    p("s_barrier")
    st(p, "x2poll")
    for gI in range(12, 16): aload(gI)
    NB = 44
    def bload(i):
        gI, q = i // 4, i % 4
        if q == 0: rot_off("s34", "s54", gI)
        p.add(I("buffer_load_dwordx4 %s, v13, s[20:23], s34 offen offset:%d sc1" % (vr(64 + 4 * (i % NB), 4), q * 1024), vm=("B", i)))
    for i in range(NB): bload(i)
    issued = NB
    for i in range(64):
        p.add(WVM(("B", i)))
        c = "0" if i == 0 else "v[16:31]"
        p("v_mfma_f32_32x32x16_bf16 v[16:31], %s, %s, %s" % (ar(4 * i, 4), vr(64 + 4 * (i % NB), 4), c))
        if issued < 64 and i >= 1 and issued - NB <= i - 1:
            bload(issued); issued += 1
    st(p, "gmfma")
    p("s_nop 15")
    p("s_lshl_b32 s46, s24, 12\nv_add_u32 v14, s46, v13")
    for j in range(4): p("ds_write_b128 v14, %s offset:%d" % (vr(16 + 4 * j, 4), j * 1024))
    p("s_waitcnt lgkmcnt(0)\ns_barrier")
    p("s_lshl_b32 s46, s24, 10\nv_add_u32 v14, s46, v13")
    for w in range(4): p("ds_read_b128 %s, v14 offset:%d" % (vr(64 + 4 * w, 4), w * 4096))
    p("s_waitcnt lgkmcnt(0)")
    for i in range(4):
        p("v_add_f32 v%d, v%d, v%d\nv_add_f32 v%d, v%d, v%d\nv_add_f32 v%d, v%d, v%d" % (64 + i, 64 + i, 68 + i, 72 + i, 72 + i, 76 + i, 64 + i, 64 + i, 72 + i))
    p("v_cvt_pk_bf16_f32 v80, v64, v65\nv_cvt_pk_bf16_f32 v81, v66, v67")
    p("s_lshl_b32 s43, s50, 15")
    srd(p, 16, "s58", "s59", "32768", "s43")
    p("""
    s_lshl_b32 s46, s51, 6
    s_lshl_b32 s47, s24, 4
    s_add_u32 s46, s46, s47
    v_and_b32 v3, 31, v2
    v_lshrrev_b32 v4, 5, v2
    v_lshlrev_b32 v5, 10, v3
    v_lshlrev_b32 v6, 3, v4
    v_add_u32 v5, v5, v6
    buffer_store_dwordx2 v[80:81], v5, s[16:19], s46 offen
    s_waitcnt vmcnt(0)
    """)

def build_fused(**kw):
    return full_file([(None, (256, 1, 1), (256, 1, 1), 163840)], [gen_fused(**kw)])

if __name__ == "__main__":
    open("f1.s", "w").write(build_fused())
    open("f1_st.s", "w").write(build_fused(stamps=True, sel=["start", "rdy0", "qst", "x0", "bar0", "loopend", "x1ack", "x1poll", "comb", "x2poll", "gmfma", "end"]))
```

```python
from asmlib import *
import g2, sys

def amp_kernel(i0, i1, amp, mode="max"):
    a = Asm()
    a("""
    s_cmp_ge_u32 s2, 1
    s_cbranch_scc1 M_end
    s_load_dwordx2 s[8:9], s[0:1], 56
    s_waitcnt lgkmcnt(0)
    s_add_u32 s8, s8, 0x8000000
    s_addc_u32 s9, s9, 0
    v_mul_u32_u24 v1, 96, v0
    global_load_dword v4, v1, s[8:9] offset:%d
    global_load_dword v6, v1, s[8:9] offset:%d
    s_waitcnt vmcnt(0)
    v_lshlrev_b32 v2, 3, v0
    """ % (8 * i0, 8 * i1))
    if mode == "mean":
        a("""
    v_sub_u32 v6, v6, v4
    ds_write_b32 v2, v6
    s_waitcnt lgkmcnt(0)
    s_barrier
    v_mov_b32 v10, 0
    s_mov_b32 s20, 0
M_loop:
    v_mov_b32 v8, s20
    ds_read_b32 v14, v8
    s_waitcnt lgkmcnt(0)
    v_add_u32 v10, v10, v14
    s_add_u32 s20, s20, 8
    s_cmp_lt_u32 s20, 2048
    s_cbranch_scc1 M_loop
    v_lshrrev_b32 v10, 8, v10
    """)
    else:
        a("""
    ds_write_b32 v2, v4
    ds_write_b32 v2, v6 offset:4
    s_waitcnt lgkmcnt(0)
    s_barrier
    v_mov_b32 v8, 0
    v_mov_b32 v9, -1
    v_mov_b32 v10, 0
    s_mov_b32 s20, 0
    ds_read_b32 v11, v8
    s_waitcnt lgkmcnt(0)
    v_mov_b32 v12, v11
M_loop:
    v_mov_b32 v8, s20
    ds_read_b64 v[14:15], v8
    s_waitcnt lgkmcnt(0)
    v_sub_u32 v14, v14, v12
    v_sub_u32 v15, v15, v12
    v_add_u32 v14, 0x10000, v14
    v_add_u32 v15, 0x10000, v15
    v_min_u32 v9, v9, v14
    v_max_u32 v10, v10, v15
    s_add_u32 s20, s20, 8
    s_cmp_lt_u32 s20, 2048
    s_cbranch_scc1 M_loop
    v_sub_u32 v10, v10, v9
    """)
    a("""
    s_nop 1
    v_readfirstlane_b32 s21, v10
    s_nop 3
    s_mul_i32 s21, s21, %d
    s_memrealtime s[22:23]
    s_waitcnt lgkmcnt(0)
M_spin:
    s_memrealtime s[24:25]
    s_waitcnt lgkmcnt(0)
    s_sub_u32 s26, s24, s22
    s_cmp_lt_u32 s26, s21
    s_cbranch_scc1 M_spin
M_end:
    s_endpgm
    """ % amp)
    return kernel_block("amp_kernel", a.text(), 32, 64, 32)

def build(i0, i1, amp, mode, sel, **kw):
    k = g2.gen_fused(stamps=True, sel=sel, **kw).replace(NAME + "_kernel", "main_kernel")
    return full_file([("main_kernel", (256, 1, 1), (256, 1, 1), 163840), ("amp_kernel", (1, 1, 1), (256, 1, 1), 4096)], [k, amp_kernel(i0, i1, amp, mode)])

if __name__ == "__main__":
    sel = ["start", "rdy0", "qst", "x0", "bar0", "loopend", "x1ack", "x1poll", "comb", "x2poll", "gmfma", "end"]
    AMP = 10
    cfg = {"r_base": (0, 11, 0, "max"), "r_total": (0, 11, AMP, "max"), "r_head": (0, 4, AMP, "mean"), "r_loop": (4, 5, AMP, "mean"), "r_tail": (5, 11, AMP, "mean"), "r_x0": (2, 3, AMP, "mean")}
    for n, (i0, i1, amp, mode) in cfg.items():
        open("mb/%s.s" % n, "w").write(build(i0, i1, amp, mode, sel))
```
